```python
import torch

def _softmax(x, axis=-1):
    return torch.softmax(x, dim=axis)
def _gelu(x):
    return torch.nn.functional.gelu(x, approximate="tanh")
def _silu(x):
    return torch.nn.functional.silu(x)
def _sigmoid(x):
    return torch.sigmoid(x)
def _layernorm(x, axis=-1, eps=1e-5):
    m = x.mean(dim=axis, keepdim=True)
    v = x.var(dim=axis, keepdim=True, unbiased=False)
    return (x - m) / torch.sqrt(v + eps)
def _scatter_add(tgt, idx, src, axis=0):
    return tgt.clone().index_add_(axis, idx, src)
def _segment_sum(src, seg, n):
    out = torch.zeros((n,) + src.shape[1:], dtype=src.dtype)
    return out.index_add_(0, seg, src)
def _pad(x, pw):
    flat = tuple(v for pair in reversed(pw) for v in pair)
    return torch.nn.functional.pad(x, flat)

kernel_name = 'interleave_layers__sliding_block__geglu_ffn__prompt'

def setup_inputs():

    _w = (lambda a: (lambda t: t.to(torch.bfloat16) if t.is_floating_point() else t)(torch.as_tensor(a)))
    def _A_setup():
        B, S, D = 1, 2048, 448
        return {
            "x": _w((lambda *s: torch.randn(*s, dtype=torch.bfloat16) * 0.05)(B, S, D)),
            "wqkv": _w((lambda *s: torch.randn(*s, dtype=torch.bfloat16) * 0.05)(D, 3 * D)),
            "wo": _w((lambda *s: torch.randn(*s, dtype=torch.bfloat16) * 0.05)(D, D)),
        }
    _A_in = _A_setup()

    def _B_setup():
        B, S, D, F = 1, 2048, 448, 1792
        return {
            "x": _w((lambda *s: torch.randn(*s, dtype=torch.bfloat16) * 0.05)(B, S, D)),
            "w_gate": _w((lambda *s: torch.randn(*s, dtype=torch.bfloat16) * 0.05)(D, F)),
            "w_up": _w((lambda *s: torch.randn(*s, dtype=torch.bfloat16) * 0.05)(D, F)),
            "w_down": _w((lambda *s: torch.randn(*s, dtype=torch.bfloat16) * 0.05)(F, D)),
        }
    _B_in = _B_setup()

    return {
        "A_x": _A_in["x"],
        "A_wqkv": _A_in["wqkv"],
        "A_wo": _A_in["wo"],
        "B_x": _B_in["x"],
        "B_w_gate": _B_in["w_gate"],
        "B_w_up": _B_in["w_up"],
        "B_w_down": _B_in["w_down"],
    }

def reference(A_x, A_wqkv, A_wo, B_x, B_w_gate, B_w_up, B_w_down):
    def _A_ref(x, wqkv, wo):
        B, S, D = x.shape
        H = 16; Dh = D // H; W = 256
        qkv = (lambda x, *d: x.permute(*d))((x @ wqkv).reshape(B, S, 3, H, Dh), 2, 0, 3, 1, 4)
        q, k, v = qkv[0], qkv[1], qkv[2]
        scores = torch.einsum("bhqd,bhkd->bhqk", q, k) * (Dh ** -0.5)
        idx = torch.arange(S)
        mask = (idx[:, None] - idx[None, :] >= 0) & (idx[:, None] - idx[None, :] < W)
        scores = torch.where(mask[None, None], scores, -1e9)
        p = _softmax(scores, axis=-1)
        o = torch.einsum("bhqk,bhkd->bhqd", p, v)
        return (lambda x, *d: x.permute(*d))(o, 0, 2, 1, 3).reshape(B, S, D) @ wo

    def _B_ref(x, w_gate, w_up, w_down):
        return (_gelu(x @ w_gate) * (x @ w_up)) @ w_down

    x = A_x
    x = x + _A_ref(_layernorm(x, axis=-1), A_wqkv, A_wo)
    x = x + _B_ref(_layernorm(x, axis=-1), B_w_gate, B_w_up, B_w_down)
    x = x + _A_ref(_layernorm(x, axis=-1), A_wqkv, A_wo)
    x = x + _B_ref(_layernorm(x, axis=-1), B_w_gate, B_w_up, B_w_down)
    return x
```

```python
import re

TRANS = ("v_exp_f32", "v_log_f32", "v_rcp_f32", "v_rsq_f32", "v_sqrt_f32", "v_sin_f32", "v_cos_f32")


def _regs(tok):
    tok = tok.strip()
    tok = re.sub(r"^-", "", tok)
    m = re.match(r"^abs\((.*)\)$", tok)
    if m:
        tok = m.group(1)
    m = re.match(r"^([vas])\[(\d+):(\d+)\]$", tok)
    if m:
        return {(m.group(1), i) for i in range(int(m.group(2)), int(m.group(3)) + 1)}
    m = re.match(r"^([vas])(\d+)$", tok)
    if m:
        return {(m.group(1), int(m.group(2)))}
    if tok in ("vcc", "exec", "m0", "scc"):
        return {(tok, 0)}
    if tok in ("vcc_lo", "vcc_hi"):
        return {("vcc", 0)}
    return set()


class Ins:
    __slots__ = ("text", "op", "dst", "src", "kind", "passes", "srcc", "states", "is_label")

    def __init__(self, text):
        self.text = text
        self.is_label = text.rstrip().endswith(":")
        self.op = ""
        self.dst = set()
        self.src = set()
        self.srcc = set()
        self.kind = "other"
        self.passes = 0
        self.states = 1
        if self.is_label:
            self.states = 0
            self.kind = "label"
            return
        body = text.split(";")[0].strip()
        if not body or body.startswith("."):
            self.states = 0
            self.kind = "dir"
            return
        parts = body.split(None, 1)
        op = parts[0]
        self.op = op
        rest = parts[1] if len(parts) > 1 else ""
        ops = [o.strip() for o in re.split(r",(?![^\[]*\])", rest)] if rest else []
        clean = []
        for o in ops:
            clean.append(o.split()[0] if o else o)
        ops = clean
        R = [_regs(o) for o in ops]
        if op == "s_nop":
            self.states = int(ops[0], 0) + 1
            self.kind = "salu"
        elif op.startswith("v_mfma"):
            self.kind = "mfma"
            self.passes = 8 if "32x32x16" in op else 4
            self.dst = R[0]
            self.src = R[1] | R[2] | R[3]
            self.srcc = R[3]
        elif op.startswith("buffer_store") or op.startswith("global_store"):
            self.kind = "vmem"
            for r in R:
                self.src |= r
        elif op.startswith("buffer_load") or op.startswith("global_load"):
            self.kind = "vmem"
            if " lds" in body or "_lds_" in op:
                for r in R:
                    self.src |= r
                self.src.add(("m0", 0))
            else:
                self.dst = R[0]
                for r in R[1:]:
                    self.src |= r
        elif op.startswith("buffer_atomic") or op.startswith("global_atomic"):
            self.kind = "vmem"
            for r in R:
                self.src |= r
        elif op.startswith("ds_write"):
            self.kind = "ds"
            for r in R:
                self.src |= r
        elif op.startswith("ds_"):
            self.kind = "ds"
            self.dst = R[0]
            for r in R[1:]:
                self.src |= r
        elif op.startswith("v_"):
            self.kind = "valu"
            if op.startswith("v_permlane") and "swap" in op:
                self.dst = R[0] | R[1]
                self.src = R[0] | R[1]
            elif op.startswith("v_cmp"):
                self.dst = R[0]
                for r in R[1:]:
                    self.src |= r
            elif op.startswith("v_add_co") or op.startswith("v_addc_co") or op.startswith("v_sub_co"):
                self.dst = R[0] | R[1]
                for r in R[2:]:
                    self.src |= r
            else:
                self.dst = R[0]
                for r in R[1:]:
                    self.src |= r
                if op.startswith("v_fmac") or op.startswith("v_dot2c") or op.startswith("v_writelane"):
                    self.src |= R[0]
        elif op.startswith("s_"):
            self.kind = "salu"
            if op.startswith("s_cmp") or op.startswith("s_cbranch") or op in (
                "s_branch", "s_waitcnt", "s_barrier", "s_endpgm", "s_setprio", "s_sleep"):
                for r in R:
                    self.src |= r
            else:
                if R:
                    self.dst = R[0]
                for r in R[1:]:
                    self.src |= r


def _vonly(s):
    return {r for r in s if r[0] in ("v", "a")}


def _sonly(s):
    return {r for r in s if r[0] in ("s", "vcc")}


def required_gap(p, c):
    need = 0
    pv = _vonly(p.dst)
    if p.kind == "valu":
        is_dot = p.op.startswith("v_dot")
        if c.kind == "mfma" and pv & c.src:
            need = max(need, 3 if is_dot else 2)
        if c.kind == "valu":
            if p.op in TRANS and c.op not in TRANS and pv & (c.src | c.dst):
                need = max(need, 1)
            if p.op in TRANS and c.op in TRANS and pv & c.src:
                need = max(need, 1)
            if c.op.startswith("v_permlane") and pv & c.src:
                need = max(need, 2)
            if (c.op.startswith("v_readlane") or c.op.startswith("v_readfirstlane")) and pv & c.src:
                need = max(need, 1)
            if "dpp" in c.text and pv & c.src:
                need = max(need, 2)
            if ("sdwa" in p.text or "_sel:" in p.text) and pv & (c.src | c.dst):
                need = max(need, 1)
            if is_dot and pv & (c.src | c.dst):
                if c.op == p.op:
                    ab = c.src - c.dst
                    if pv & ab:
                        need = max(need, 3)
                else:
                    need = max(need, 3)
            ps = _sonly(p.dst)
            if ps & c.src:
                need = max(need, 4 if c.op.startswith("v_readlane") or c.op.startswith("v_writelane") else 2)
        if is_dot and c.kind in ("vmem", "ds") and pv & c.src:
            need = max(need, 3)
        if c.kind == "vmem" and _sonly(p.dst) & c.src:
            need = max(need, 5)
        if c.kind == "salu" and _sonly(p.dst) & c.src:
            need = max(need, 1)
    if p.kind == "mfma":
        big = 12 if p.passes == 8 else 8
        if c.kind == "mfma":
            ab = c.src - c.srcc
            if pv & ab:
                need = max(need, big)
            if pv & c.srcc and not (c.srcc == p.dst and c.passes == p.passes):
                need = max(need, 10 if p.passes == 8 else 6)
            if pv & c.dst and not (c.dst == p.dst):
                need = max(need, big)
        elif c.kind in ("valu", "vmem", "ds"):
            if pv & (c.src | c.dst):
                need = max(need, big)
        if c.kind == "valu" and _vonly(p.srcc) & c.dst:
            need = max(need, 7 if p.passes == 8 else 3)
    if p.kind == "salu" and ("m0", 0) in p.dst and c.kind == "vmem" and ("m0", 0) in c.src:
        need = max(need, 1)
    if p.kind == "vmem" and ("store" in p.op) and ("x4" in p.op or "x3" in p.op):
        if c.kind != "vmem" and _vonly(p.src) & c.dst:
            need = max(need, 2)
    return need


class Kernel:
    def __init__(self, name):
        self.name = name
        self.ins = []
        self.vm = []
        self.lg = []
        self.nlabel = 0

    def e(self, text):
        for line in text.split("\n"):
            line = line.strip()
            if line:
                self.ins.append(Ins(line))

    def label(self, base="L"):
        self.nlabel += 1
        return f"{self.name}_{base}{self.nlabel}"

    def vmem(self, text, tag=None):
        self.e(text)
        self.vm.append(tag)

    def wait_vm(self, tag):
        idxs = [i for i, t in enumerate(self.vm) if t == tag]
        if not idxs:
            return
        idx = max(idxs)
        n = len(self.vm) - 1 - idx
        assert n <= 63
        self.e(f"s_waitcnt vmcnt({n})")
        self.vm = self.vm[idx + 1:]

    def wait_vm_all(self):
        self.e("s_waitcnt vmcnt(0)")
        self.vm = []

    def lds(self, text, tag=None):
        self.e(text)
        self.lg.append(tag)

    def wait_lg(self, tag):
        idxs = [i for i, t in enumerate(self.lg) if t == tag]
        if not idxs:
            return
        idx = max(idxs)
        n = len(self.lg) - 1 - idx
        assert n <= 15, n
        self.e(f"s_waitcnt lgkmcnt({n})")
        self.lg = self.lg[idx + 1:]

    def wait_lg_all(self):
        self.e("s_waitcnt lgkmcnt(0)")
        self.lg = []

    def finalize(self):
        out = []
        WINDOW = 14
        for ins in self.ins:
            if ins.kind in ("label", "dir"):
                out.append(ins)
                continue
            need_extra = 0
            dist = 0
            for p in reversed(out):
                if p.kind == "dir":
                    continue
                if p.kind == "label":
                    continue
                g = required_gap(p, ins)
                if g > dist:
                    need_extra = max(need_extra, g - dist)
                dist += p.states
                if dist >= WINDOW:
                    break
            while need_extra > 0:
                n = min(need_extra, 16)
                out.append(Ins(f"s_nop {n - 1}"))
                need_extra -= n
            out.append(ins)
        self.ins = out

    def max_regs(self):
        mv = ma = ms = -1
        for i in self.ins:
            for r in i.dst | i.src:
                if r[0] == "v":
                    mv = max(mv, r[1])
                elif r[0] == "a":
                    ma = max(ma, r[1])
                elif r[0] == "s":
                    ms = max(ms, r[1])
        return mv, ma, ms

    def text(self):
        self.finalize()
        s = [f".globl {self.name}", ".p2align 8", f".type {self.name},@function", f"{self.name}:"]
        for i in self.ins:
            s.append(i.text if i.is_label else "    " + i.text)
        return "\n".join(s) + "\n"

    def descriptor(self):
        mv, ma, ms = self.max_regs()
        acc_off = ((mv + 1 + 3) // 4) * 4
        acc_off = max(acc_off, 4)
        nfv = acc_off + (ma + 1) if ma >= 0 else mv + 1
        nfs = max(ms + 1, 8)
        return f""".p2align 6
.amdhsa_kernel {self.name}
  .amdhsa_next_free_vgpr {nfv}
  .amdhsa_next_free_sgpr {nfs}
  .amdhsa_accum_offset {acc_off}
  .amdhsa_group_segment_fixed_size 0
  .amdhsa_kernarg_size 80
  .amdhsa_user_sgpr_count 2
  .amdhsa_user_sgpr_kernarg_segment_ptr 1
  .amdhsa_system_sgpr_workgroup_id_x 1
.end_amdhsa_kernel
"""
```

```python
from asmlib import Kernel
from layout import *
from k_lngemm import prologue, V_L16

VQ = 8
VS = 16
VO = 160
VT = 176
AK = 0
AV = 72
NEG = "0xf149f2ca"


def build_attn(name):
    k = Kernel(name)
    L_end = prologue(k, 256)
    k.e("s_and_b32 s13, s2, 15")
    k.e("s_lshr_b32 s14, s2, 4")
    k.e("s_lshl_b32 s14, s14, 2")
    k.e("s_add_u32 s14, s14, s12")
    k.e("s_lshl_b32 s15, s13, 6")
    k.e("s_add_u32 s15, s15, s14")
    k.e("s_lshl_b32 s15, s15, 11")
    k.e(f"s_add_u32 s16, s15, {WS_Q}")
    k.e(f"s_add_u32 s17, s15, {WS_K - 8*2048}")
    k.e(f"s_add_u32 s18, s15, {WS_V - 8*2048}")
    for u in range(2):
        k.vmem(f"buffer_load_dwordx4 v[{VQ+4*u}:{VQ+4*u+3}], v{V_L16}, s[8:11], s16 offen offset:{u*1024}", "q")
    for i in range(9):
        if i and i % 2 == 0:
            k.e("s_add_u32 s17, s17, 4096")
        for u in range(2):
            r = AK + (i * 2 + u) * 4
            k.vmem(f"buffer_load_dwordx4 a[{r}:{r+3}], v{V_L16}, s[8:11], s17 offen offset:{(i%2)*2048+u*1024}", ("k", i))
    for i in range(9):
        if i and i % 2 == 0:
            k.e("s_add_u32 s18, s18, 4096")
        for u in range(2):
            r = AV + (i * 2 + u) * 4
            k.vmem(f"buffer_load_dwordx4 a[{r}:{r+3}], v{V_L16}, s[8:11], s18 offen offset:{(i%2)*2048+u*1024}", ("v", i))
    k.e(f"v_and_b32 v{VT}, 31, v0")
    k.e(f"v_lshrrev_b32 v{VT+1}, 5, v0")
    k.e(f"v_lshlrev_b32 v{VT+1}, 2, v{VT+1}")
    k.e(f"v_sub_u32 v{VT}, v{VT}, v{VT+1}")
    SM = 32
    for r in range(16):
        c = 8 * (r >> 2) + (r & 3)
        k.e(f"v_cmp_ge_i32 s[{SM+2*r}:{SM+2*r+1}], v{VT}, {c}")
    k.e(f"v_mov_b32 v{VT+2}, {NEG}")
    k.e("s_lshl_b32 s19, s14, 5")
    k.e("s_lshl_b32 s20, s13, 1")
    k.e("s_add_u32 s19, s19, s20")
    k.e("s_lshl_b32 s19, s19, 10")
    k.e(f"s_add_u32 s19, s19, {WS_O}")
    for i in range(9):
        k.wait_vm(("k", i))
        s = VS + i * 16
        for u in range(2):
            r = AK + (i * 2 + u) * 4
            c = "0" if u == 0 else f"v[{s}:{s+15}]"
            k.e(f"v_mfma_f32_32x32x16_bf16 v[{s}:{s+15}], a[{r}:{r+3}], v[{VQ+4*u}:{VQ+4*u+3}], {c}")
    for r in range(16):
        k.e(f"v_cndmask_b32 v{VS+r}, v{VS+r}, v{VT+2}, s[{SM+2*r}:{SM+2*r+1}]")
    for r in range(16):
        k.e(f"v_cndmask_b32 v{VS+128+r}, v{VT+2}, v{VS+128+r}, s[{SM+2*r}:{SM+2*r+1}]")
    L_ok = k.label("ok")
    k.e("s_cmp_ge_u32 s14, 8")
    k.e(f"s_cbranch_scc1 {L_ok}")
    for i in range(8):
        L_skip = k.label("skip")
        k.e(f"s_cmp_ge_u32 s14, {8-i}")
        k.e(f"s_cbranch_scc1 {L_skip}")
        for r in range(16):
            k.e(f"v_mov_b32 v{VS+i*16+r}, v{VT+2}")
        k.e(f"{L_skip}:")
    k.e(f"{L_ok}:")
    M0, M1 = VT + 3, VT + 4
    k.e(f"v_max3_f32 v{M0}, v{VS}, v{VS+1}, v{VS+2}")
    k.e(f"v_max3_f32 v{M1}, v{VS+3}, v{VS+4}, v{VS+5}")
    idx = 6
    tog = 0
    while idx + 1 < 144:
        m = (M0, M1)[tog]
        k.e(f"v_max3_f32 v{m}, v{m}, v{VS+idx}, v{VS+idx+1}")
        idx += 2
        tog ^= 1
    k.e(f"v_max_f32 v{M0}, v{M0}, v{M1}")
    k.e(f"v_mov_b32 v{M1}, v{M0}")
    k.e(f"v_permlane32_swap_b32 v{M1}, v{M0}")
    k.e(f"v_max_f32 v{M0}, v{M0}, v{M1}")
    pend = []
    for i in range(9):
        s = VS + i * 16
        for r in range(16):
            k.e(f"v_sub_f32 v{s+r}, v{s+r}, v{M0}")
            if r == 3 and pend:
                k.e(pend.pop(0))
        for r in range(16):
            k.e(f"v_exp_f32 v{s+r}, v{s+r}")
            if r == 3 and pend:
                k.e(pend.pop(0))
        for j in range(8):
            k.e(f"v_cvt_pk_bf16_f32 v{s+j}, v{s+2*j}, v{s+2*j+1}")
        k.wait_vm(("v", i))
        for u in range(2):
            r = AV + (i * 2 + u) * 4
            c = "0" if (i == 0 and u == 0) else f"v[{VO}:{VO+15}]"
            pend.append(f"v_mfma_f32_32x32x16_bf16 v[{VO}:{VO+15}], a[{r}:{r+3}], v[{s+4*u}:{s+4*u+3}], {c}")
    while pend:
        k.e(pend.pop(0))
    k.e(f"v_mov_b32 v{VT}, v{VO+12}")
    k.e(f"v_mov_b32 v{VT+1}, v{VO+12}")
    k.e(f"v_permlane32_swap_b32 v{VT}, v{VT+1}")
    k.e(f"v_rcp_f32 v{VT+1}, v{VT+1}")
    for r in range(16):
        k.e(f"v_mul_f32 v{VO+r}, v{VO+r}, v{VT+1}")
    for j in range(8):
        k.e(f"v_cvt_pk_bf16_f32 v{VO+j}, v{VO+2*j}, v{VO+2*j+1}")
    k.vmem(f"buffer_store_dwordx4 v[{VO}:{VO+3}], v{V_L16}, s[8:11], s19 offen", "st")
    k.vmem(f"buffer_store_dwordx4 v[{VO+4}:{VO+7}], v{V_L16}, s[8:11], s19 offen offset:1024", "st")
    k.e(f"{L_end}:")
    k.e("s_endpgm")
    return k, dict(grid=256, block=256, lds=0)
```

```python
import struct
from asmlib import Kernel
from layout import *


def f2u(x):
    return "0x%08x" % struct.unpack("<I", struct.pack("<f", x))[0]


QSCALE = (DH ** -0.5) * 1.4426950408889634
C1 = -2.0 * 0.7978845608028654 * 1.4426950408889634
C3 = C1 * 0.044715

VX = 16
VXE = 128
VRING = 132
RING = 5
PF = 3
VACC = 152
VT = 200
V_L16, V_L4, V_S1, V_S2, V_ONE, V_RSTD, V_K1, V_K3, V_Q, V_LB0, V_LB1, V_LB2 = 1, 2, 3, 4, 5, 6, 7, 8, 9, 10, 11, 12


def prologue(k, nwg):
    L_end = k.label("end")
    k.e(f"s_cmp_ge_u32 s2, {nwg}")
    k.e(f"s_cbranch_scc1 {L_end}")
    k.e(f"s_load_dwordx2 s[4:5], s[0:1], {KA_WS}")
    k.e("v_lshrrev_b32 v13, 6, v0")
    k.e("v_and_b32 v0, 63, v0")
    k.e("v_readfirstlane_b32 s12, v13")
    k.e(f"v_lshlrev_b32 v{V_L16}, 4, v0")
    k.e(f"v_lshlrev_b32 v{V_L4}, 2, v0")
    k.e("s_waitcnt lgkmcnt(0)")
    k.e("s_mov_b32 s8, s4")
    k.e("s_mov_b32 s9, s5")
    k.e(f"s_mov_b32 s10, {WS_BYTES}")
    k.e("s_mov_b32 s11, 0x00020000")
    return L_end


def build_lngemm(name, kind, xoff):
    k = Kernel(name)
    NT = 3 if kind == "qkv" else 7
    NSLOT = 3 if kind == "qkv" else 5
    phases = [[0, 1, 2]] if kind == "qkv" else [[0], [1], [2], [3], [4], [5], [6]]
    woff = WS_WQKV if kind == "qkv" else WS_WGU
    LDS_SCR = NSLOT * TILE
    lds_bytes = LDS_SCR + 512
    L_end = prologue(k, 256)
    k.e("s_lshr_b32 s13, s2, 4")
    k.e("s_and_b32 s14, s2, 15")
    k.e("s_lshl_b32 s15, s13, 2")
    k.e("s_add_u32 s15, s15, s12")
    k.e("s_mul_i32 s16, s15, 28672")
    k.e(f"s_add_u32 s16, s16, {xoff}")
    k.e(f"s_mul_i32 s17, s14, {NT*TILE}")
    k.e(f"s_add_u32 s17, s17, {woff}")
    k.e("s_lshl_b32 s18, s12, 10")
    k.e("s_lshl_b32 s19, s12, 8")
    k.e(f"v_mov_b32 v{V_ONE}, 0x3f803f80")
    k.e(f"v_mov_b32 v{V_S1}, 0")
    k.e(f"v_mov_b32 v{V_S2}, 0")
    k.e(f"v_mov_b32 v{V_LB0}, v{V_L16}")
    k.e(f"v_add_u32 v{V_LB1}, {2*TILE}, v{V_L16}")
    k.e(f"v_add_u32 v{V_LB2}, {4*TILE}, v{V_L16}")

    def dma_chunk(t, g):
        slot = t % NSLOT
        if g < 7:
            k.e(f"s_add_u32 m0, s18, {slot*TILE + g*4096}")
            k.e(f"s_add_u32 s20, s18, {t*TILE + g*4096}")
            k.e("s_add_u32 s20, s20, s17")
            k.vmem(f"buffer_load_dwordx4 v{V_L16}, s[8:11], s20 offen lds", ("w", t, g))
        else:
            k.e(f"s_add_u32 m0, s19, {slot*TILE + 28*1024}")
            k.e(f"s_add_u32 s20, s19, {t*TILE + 28*1024}")
            k.e("s_add_u32 s20, s20, s17")
            k.vmem(f"buffer_load_dword v{V_L4}, s[8:11], s20 offen lds", ("w", t, g))
        assert len(k.vm) <= 63

    def xload(ks):
        r = VX + ks * 4
        if ks and ks % 4 == 0:
            k.e("s_add_u32 s16, s16, 4096")
        k.vmem(f"buffer_load_dwordx4 v[{r}:{r+3}], v{V_L16}, s[8:11], s16 offen offset:{(ks%4)*1024}", ("x", ks))
        assert len(k.vm) <= 63

    for g in range(7):
        for ks in range(4 * g, 4 * g + 4):
            xload(ks)
        for t in phases[0]:
            dma_chunk(t, g)
    for t in phases[0]:
        dma_chunk(t, 7)
    issued = list(phases[0])
    later = [t for ph in phases[1:] for t in ph]
    while later and len(issued) < NSLOT and len(k.vm) + 8 <= 60:
        t = later.pop(0)
        for g in range(8):
            dma_chunk(t, g)
        issued.append(t)

    steps = []
    for pi, ph in enumerate(phases):
        for ks in range(29):
            for ti, t in enumerate(ph):
                sync = None
                if pi == 0:
                    if ks < 28 and ks % 4 == 0 and ti == 0:
                        sync = ("w", ph[-1], ks // 4)
                    if ks == 28 and ti == 0:
                        sync = ("w", ph[-1], 7)
                else:
                    if ks == 0:
                        sync = ("w", t, 7)
                steps.append((t, ks, sync, pi))
    N = len(steps)

    fill = []

    def acc_of(t):
        return VACC + (t % 3) * 16

    def lds_addr(t, ks):
        slot = t % NSLOT
        off = slot * TILE + ks * 1024
        base, boff = (V_LB0, 0) if slot < 2 else ((V_LB1, 2 * TILE) if slot < 4 else (V_LB2, 4 * TILE))
        return base, off - boff

    def stats_fill(ks):
        r = VX + ks * 4
        for j in range(4):
            fill.append(f"v_dot2c_f32_bf16 v{V_S1}, v{r+j}, v{V_ONE}")
            fill.append(f"v_dot2c_f32_bf16 v{V_S2}, v{r+j}, v{r+j}")

    def stats_final():
        T = VT
        L = []
        L.append(f"v_mov_b32 v{T}, v{V_S1}")
        L.append(f"v_mov_b32 v{T+1}, v{V_S2}")
        L.append(f"v_permlane32_swap_b32 v{T}, v{V_S1}")
        L.append(f"v_permlane32_swap_b32 v{T+1}, v{V_S2}")
        L.append(f"v_add_f32 v{V_S1}, v{T}, v{V_S1}")
        L.append(f"v_add_f32 v{V_S2}, v{T+1}, v{V_S2}")
        L.append(f"v_mul_f32 v{V_S1}, {f2u(-1.0/D)}, v{V_S1}")
        L.append(f"v_mul_f32 v{V_S2}, {f2u(1.0/D)}, v{V_S2}")
        L.append(f"v_fma_f32 v{V_S2}, -v{V_S1}, v{V_S1}, v{V_S2}")
        L.append(f"v_max_f32 v{V_S2}, 0, v{V_S2}")
        L.append(f"v_add_f32 v{V_Q}, {f2u(1e-5)}, v{V_S2}")
        L.append(f"v_cvt_pk_bf16_f32 v{VXE}, v{V_S1}, v{V_S1}")
        L.append(f"v_rsq_f32 v{V_RSTD}, v{V_Q}")
        L.append(f"v_lshlrev_b32 v{T}, 16, v{VXE}")
        L.append(f"v_sub_f32 v{T}, v{V_S1}, v{T}")
        L.append(f"v_cvt_pk_bf16_f32 v{VXE+1}, v{T}, v{T}")
        L.append(f"v_mov_b32 v{VXE+2}, v{VXE}")
        L.append(f"v_mov_b32 v{VXE+3}, v{VXE+1}")
        if kind == "gu":
            L.append(f"v_mul_f32 v{V_K1}, {f2u(C1)}, v{V_RSTD}")
            L.append(f"v_mul_f32 v{T}, v{V_RSTD}, v{V_RSTD}")
            L.append(f"v_mul_f32 v{T}, v{T}, v{V_RSTD}")
            L.append(f"v_mul_f32 v{V_K3}, {f2u(C3)}, v{T}")
        else:
            L.append(f"v_mul_f32 v{V_K1}, {f2u(QSCALE)}, v{V_RSTD}")
        return L

    def epilogue_gu(t):
        a0 = acc_of(t)
        T = VT + 8
        L = []
        for half in range(2):
            idx = range(half * 4, half * 4 + 4)
            for i in idx:
                L.append(f"v_mul_f32 v{T+i}, v{a0+i}, v{a0+i}")
            for i in idx:
                L.append(f"v_fma_f32 v{T+i}, v{T+i}, v{V_K3}, v{V_K1}")
            for i in idx:
                L.append(f"v_mul_f32 v{T+i}, v{a0+i}, v{T+i}")
            for i in idx:
                L.append(f"v_exp_f32 v{T+i}, v{T+i}")
            for i in idx:
                L.append(f"v_mul_f32 v{a0+i}, v{a0+i}, v{a0+8+i}")
            for i in idx:
                L.append(f"v_fma_f32 v{T+i}, v{T+i}, v{V_Q}, v{V_Q}")
            for i in idx:
                L.append(f"v_rcp_f32 v{T+i}, v{T+i}")
            for i in idx:
                L.append(f"v_mul_f32 v{a0+i}, v{a0+i}, v{T+i}")
        O = VT + 16 + (t % 2) * 4
        for j in range(4):
            L.append(f"v_cvt_pk_bf16_f32 v{O+j}, v{a0+2*j}, v{a0+2*j+1}")
        if t == 4:
            L.append("s_add_u32 s21, s21, 4096")
        L.append(("vmem", f"buffer_store_dwordx4 v[{O}:{O+3}], v{V_L16}, s[8:11], s21 offen offset:{(t%4)*1024}"))
        return L

    def emit_fill(n):
        for _ in range(n):
            if not fill:
                return
            f = fill.pop(0)
            if isinstance(f, tuple):
                k.vmem(f[1], "st")
            elif callable(f):
                f()
            else:
                k.e(f)

    if kind == "gu":
        k.e("s_mul_i32 s21, s15, 112")
        k.e("s_mul_i32 s22, s14, 7")
        k.e("s_add_u32 s21, s21, s22")
        k.e("s_lshl_b32 s21, s21, 10")
        k.e(f"s_add_u32 s21, s21, {WS_H}")

    stats_done = False
    FILL_PER = 5
    for i in range(N + PF):
        if i < N:
            t, ks, sync, pi = steps[i]
            if sync is not None:
                if pi == 0 and ks < 28:
                    pass
                k.wait_vm(sync)
                k.e("s_barrier")
                if pi == 0 and ks < 28:
                    for kk in range(ks, ks + 4):
                        stats_fill(kk)
                    if ks == 24:
                        fill.extend(stats_final())
                        fill.append("MARK_STATS")
                if pi >= 1 and later:
                    nt = later[0]
                    victim = nt - NSLOT
                    if victim <= t - 2 or nt < NSLOT:
                        later.pop(0)
                        for g in range(8):
                            dma_chunk(nt, g)
                        issued.append(nt)
            base, off = lds_addr(t, ks)
            r = VRING + (i % RING) * 4
            k.lds(f"ds_read_b128 v[{r}:{r+3}], v{base} offset:{off}", i)
        j = i - PF
        if j >= 0:
            t, ks, sync, pi = steps[j]
            if ks == 28 and not stats_done:
                while fill:
                    if fill[0] == "MARK_STATS":
                        fill.pop(0)
                        break
                    emit_fill(1)
                stats_done = True
            k.wait_lg(j)
            r = VRING + (j % RING) * 4
            xr = VX + ks * 4 if ks < 28 else VXE
            a = acc_of(t)
            c = "0" if ks == 0 else f"v[{a}:{a+15}]"
            if kind == "qkv" and t == 2:
                k.e(f"v_mfma_f32_32x32x16_bf16 v[{a}:{a+15}], v[{xr}:{xr+3}], v[{r}:{r+3}], {c}")
            else:
                k.e(f"v_mfma_f32_32x32x16_bf16 v[{a}:{a+15}], v[{r}:{r+3}], v[{xr}:{xr+3}], {c}")
            if kind == "gu" and ks == 2 and t >= 1:
                fill.extend(epilogue_gu(t - 1))
            n = FILL_PER
            while n > 0 and fill:
                if fill[0] == "MARK_STATS":
                    fill.pop(0)
                    stats_done = True
                    continue
                emit_fill(1)
                n -= 1
    while fill:
        emit_fill(1)

    if kind == "gu":
        fill.extend(epilogue_gu(NT - 1))
        while fill:
            emit_fill(1)
    else:
        k.e("s_lshl_b32 s22, s12, 7")
        k.e(f"s_add_u32 s22, s22, {LDS_SCR}")
        k.e(f"v_and_b32 v{VT}, 31, v0")
        k.e(f"v_lshlrev_b32 v{VT}, 2, v{VT}")
        k.e(f"v_add_u32 v{VT}, s22, v{VT}")
        k.lds(f"ds_write_b32 v{VT}, v{V_RSTD}", "w")
        k.e(f"v_lshrrev_b32 v{VT+1}, 5, v0")
        k.e(f"v_lshlrev_b32 v{VT+1}, 4, v{VT+1}")
        k.e(f"v_add_u32 v{VT+1}, s22, v{VT+1}")
        k.wait_lg_all()
        RR = VT + 4
        for q in range(4):
            k.lds(f"ds_read_b128 v[{RR+4*q}:{RR+4*q+3}], v{VT+1} offset:{q*32}", "r")
        k.e("s_lshl_b32 s21, s14, 6")
        k.e("s_add_u32 s21, s21, s15")
        k.e("s_lshl_b32 s21, s21, 11")
        for t, (wsoff, sc) in enumerate(((WS_Q, V_K1), (WS_K, V_RSTD))):
            a = acc_of(t)
            for r in range(16):
                k.e(f"v_mul_f32 v{a+r}, v{a+r}, v{sc}")
            for j in range(8):
                k.e(f"v_cvt_pk_bf16_f32 v{a+j}, v{a+2*j}, v{a+2*j+1}")
            k.e(f"s_add_u32 s22, s21, {wsoff}")
            k.vmem(f"buffer_store_dwordx4 v[{a}:{a+3}], v{V_L16}, s[8:11], s22 offen", "st")
            k.vmem(f"buffer_store_dwordx4 v[{a+4}:{a+7}], v{V_L16}, s[8:11], s22 offen offset:1024", "st")
        a = acc_of(2)
        k.e(f"v_and_b32 v{VT}, 31, v0")
        k.e(f"v_cmp_eq_u32 vcc, 28, v{VT}")
        k.wait_lg_all()
        for r in range(16):
            k.e(f"v_mul_f32 v{a+r}, v{a+r}, v{RR+r}")
        for j in range(8):
            k.e(f"v_cvt_pk_bf16_f32 v{a+j}, v{a+2*j}, v{a+2*j+1}")
        for j in range(8):
            k.e(f"v_cndmask_b32 v{a+j}, v{a+j}, v{V_ONE}, vcc")
        k.e(f"s_add_u32 s22, s21, {WS_V}")
        k.vmem(f"buffer_store_dwordx4 v[{a}:{a+3}], v{V_L16}, s[8:11], s22 offen", "st")
        k.vmem(f"buffer_store_dwordx4 v[{a+4}:{a+7}], v{V_L16}, s[8:11], s22 offen offset:1024", "st")
    k.e(f"{L_end}:")
    k.e("s_endpgm")
    return k, dict(grid=256, block=256, lds=lds_bytes)
```

```python
from asmlib import Kernel
from layout import *

N_GU, N_QKV, N_WO, N_WD, N_X = 112, 96, 28, 112, 128
B_G = 0
B_U = B_G + N_GU
B_QKV = B_U + N_GU
B_WO = B_QKV + N_QKV
B_WD = B_WO + N_WO
B_X = B_WD + N_WD
N_UNITS = B_X + N_X
PREP_LDS = 15360


def srd(k, d, base, nbytes):
    k.e(f"s_mov_b32 s{d}, s{base}")
    k.e(f"s_mov_b32 s{d+1}, s{base+1}")
    k.e(f"s_mov_b32 s{d+2}, {nbytes}")
    k.e(f"s_mov_b32 s{d+3}, 0x00020000")


def build_prep():
    k = Kernel("prep_kernel")
    L_end = k.label("end")
    k.e(f"s_cmp_ge_u32 s2, {N_UNITS}")
    k.e(f"s_cbranch_scc1 {L_end}")
    k.e("s_load_dwordx16 s[4:19], s[0:1], 0")
    k.e(f"s_load_dwordx2 s[20:21], s[0:1], {KA_WS}")
    k.e("v_lshrrev_b32 v1, 5, v0")
    k.e("v_lshlrev_b32 v2, 2, v1")
    k.e("v_bfe_u32 v3, v0, 2, 2")
    k.e("v_add_u32 v2, v2, v3")
    k.e("v_lshlrev_b32 v2, 7, v2")
    k.e("v_bfe_u32 v3, v0, 4, 1")
    k.e("v_lshlrev_b32 v4, 5, v3")
    k.e("v_add_u32 v2, v2, v4")
    k.e("v_and_b32 v4, 3, v0")
    k.e("v_lshlrev_b32 v4, 3, v4")
    k.e("v_add_u32 v2, v2, v4")
    k.e("v_lshrrev_b32 v5, 3, v0")
    k.e("v_and_b32 v6, 7, v0")
    k.e("v_lshlrev_b32 v6, 4, v6")
    k.e("v_lshlrev_b32 v7, 4, v0")
    k.e("v_mov_b32 v8, 0x3f803f80")
    k.e("s_waitcnt lgkmcnt(0)")
    srd(k, 24, 20, WS_BYTES)
    labels = {n: k.label(n) for n in ("gate", "up", "qkv", "wo", "wd", "x")}
    for n, b in (("x", B_X), ("wd", B_WD), ("wo", B_WO), ("qkv", B_QKV), ("up", B_U)):
        k.e(f"s_cmp_ge_u32 s2, {b}")
        k.e(f"s_cbranch_scc1 {labels[n]}")
    k.e(f"s_branch {labels['gate']}")

    FR = 16

    def dma(pitch):
        k.e(f"s_mov_b32 s34, {pitch}")
        k.e("v_mul_lo_u32 v9, v5, s34")
        k.e("v_add_u32 v9, v9, v6")
        for i in range(14):
            k.e(f"s_mov_b32 m0, {i*1024}")
            k.e(f"buffer_load_dwordx4 v9, s[28:31], s33 offen lds")
            if i < 13:
                k.e(f"s_add_u32 s33, s33, {8*pitch}")
        k.e("s_waitcnt vmcnt(0)")

    def trread(reg, off):
        k.e(f"ds_read_b64_tr_b16 v[{reg}:{reg+1}], v2 offset:{off}")
        k.e(f"ds_read_b64_tr_b16 v[{reg+2}:{reg+3}], v2 offset:{off+1024}")

    def colsum_ext(nfr_per_T, vext, soff_reg_T):
        for T in range(2):
            acc = 10 + T
            k.e(f"v_mov_b32 v{acc}, 0")
            for ksl in range(7):
                r = FR + (ksl * 2 + T) * 4
                for j in range(4):
                    k.e(f"v_dot2c_f32_bf16 v{acc}, v{r+j}, v8")
        for T in range(2):
            acc = 10 + T
            k.e(f"v_mov_b32 v12, v{acc}")
            k.e(f"v_permlane32_swap_b32 v12, v{acc}")
            k.e(f"v_add_f32 v{acc}, v12, v{acc}")
            k.e(f"v_cvt_pk_bf16_f32 v12, v{acc}, v{acc}")
            k.e("v_lshlrev_b32 v12, 16, v12")
            k.e(f"v_sub_f32 v13, v{acc}, v12")
            k.e(f"v_cvt_pk_bf16_f32 v14, v{acc}, v13")
            k.e("v_mov_b32 v15, v14")
            k.e(f"buffer_store_dwordx2 v[14:15], v{vext}, s[24:27], s{soff_reg_T[T]} offen")
            k.e("s_nop 1")

    for half, name, base, ptr in ((0, "gate", B_G, 12), (1, "up", B_U, 14)):
        k.e(f"{labels[name]}:")
        srd(k, 28, ptr, 448 * 3584)
        k.e(f"s_sub_u32 s32, s2, {base}")
        k.e("s_lshr_b32 s35, s32, 2")
        k.e("s_and_b32 s36, s32, 3")
        k.e(f"s_mul_i32 s33, s36, {112*3584}")
        k.e("s_lshl_b32 s37, s35, 7")
        k.e("s_add_u32 s33, s33, s37")
        dma(3584)
        for ksl in range(7):
            for T in range(2):
                trread(FR + (ksl * 2 + T) * 4, ksl * 2048 + T * 64)
        k.e(f"s_mov_b32 s34, {TILE}")
        k.e("v_mul_lo_u32 v3, v3, s34")
        k.e("v_and_b32 v4, 15, v0")
        k.e(f"v_add_u32 v4, {half*16}, v4")
        k.e("v_lshlrev_b32 v4, 4, v4")
        k.e("v_add_u32 v4, v4, v3")
        k.e("v_lshlrev_b32 v3, 9, v1")
        k.e("v_add_u32 v3, v3, v4")
        k.e(f"s_mul_i32 s38, s35, {4*TILE}")
        k.e(f"s_add_u32 s38, s38, {WS_WGU}")
        k.e(f"s_add_u32 s39, s38, {2*TILE}")
        k.e(f"s_mul_i32 s37, s36, {7*1024}")
        k.e("s_add_u32 s40, s38, s37")
        k.e("s_add_u32 s41, s39, s37")
        k.e("s_lshr_b32 s37, s36, 1")
        k.e("s_lshl_b32 s37, s37, 9")
        k.e("s_and_b32 s42, s36, 1")
        k.e("s_lshl_b32 s42, s42, 3")
        k.e("s_add_u32 s37, s37, s42")
        k.e(f"s_add_u32 s37, s37, {28*1024}")
        k.e("s_add_u32 s42, s38, s37")
        k.e("s_add_u32 s43, s39, s37")
        k.e("s_waitcnt lgkmcnt(0)")
        for ksl in range(7):
            if ksl == 4:
                k.e("s_add_u32 s40, s40, 4096")
                k.e("s_add_u32 s41, s41, 4096")
            for T in range(2):
                r = FR + (ksl * 2 + T) * 4
                k.e(f"buffer_store_dwordx4 v[{r}:{r+3}], v3, s[24:27], s{40+T} offen offset:{(ksl%4)*1024}")
        colsum_ext(7, 4, (42, 43))
        k.e(f"s_branch {L_end}")

    k.e(f"{labels['qkv']}:")
    srd(k, 28, 6, 448 * 2688)
    k.e(f"s_sub_u32 s32, s2, {B_QKV}")
    k.e("s_lshr_b32 s35, s32, 5")
    k.e("s_bfe_u32 s44, s32, 0x30002")
    k.e("s_and_b32 s36, s32, 3")
    k.e(f"s_mul_i32 s33, s36, {112*2688}")
    k.e("s_mul_i32 s37, s35, 896")
    k.e("s_add_u32 s33, s33, s37")
    k.e("s_mul_i32 s37, s44, 112")
    k.e("s_add_u32 s33, s33, s37")
    dma(2688)
    for ksl in range(7):
        for T in range(2):
            trread(FR + (ksl * 2 + T) * 4, ksl * 2048 + T * 56)
    k.e(f"s_mul_i32 s38, s44, {6*TILE}")
    k.e(f"s_mul_i32 s37, s35, {TILE}")
    k.e("s_add_u32 s38, s38, s37")
    k.e(f"s_add_u32 s38, s38, {WS_WQKV}")
    k.e(f"s_add_u32 s39, s38, {3*TILE}")
    k.e(f"s_mul_i32 s37, s36, {7*1024}")
    k.e("s_add_u32 s40, s38, s37")
    k.e("s_add_u32 s41, s39, s37")
    k.e("s_lshr_b32 s37, s36, 1")
    k.e("s_lshl_b32 s37, s37, 9")
    k.e("s_and_b32 s42, s36, 1")
    k.e("s_lshl_b32 s42, s42, 3")
    k.e("s_add_u32 s37, s37, s42")
    k.e(f"s_add_u32 s37, s37, {28*1024}")
    k.e("s_add_u32 s42, s38, s37")
    k.e("s_add_u32 s43, s39, s37")
    k.e("v_and_b32 v4, 31, v0")
    k.e("v_cmp_gt_u32 vcc, 28, v4")
    k.e("v_lshlrev_b32 v4, 4, v4")
    k.e("s_waitcnt lgkmcnt(0)")
    for i in range(14 * 4):
        k.e(f"v_cndmask_b32 v{FR+i}, 0, v{FR+i}, vcc")
    for ksl in range(7):
        if ksl == 4:
            k.e("s_add_u32 s40, s40, 4096")
            k.e("s_add_u32 s41, s41, 4096")
        for T in range(2):
            r = FR + (ksl * 2 + T) * 4
            k.e(f"buffer_store_dwordx4 v[{r}:{r+3}], v7, s[24:27], s{40+T} offen offset:{(ksl%4)*1024}")
    colsum_ext(7, 4, (42, 43))
    k.e(f"s_branch {L_end}")

    k.e(f"{labels['wo']}:")
    srd(k, 28, 8, 448 * 896)
    k.e(f"s_sub_u32 s32, s2, {B_WO}")
    k.e("s_lshr_b32 s35, s32, 2")
    k.e("s_and_b32 s36, s32, 3")
    k.e(f"s_mul_i32 s33, s36, {112*896}")
    k.e("s_lshl_b32 s37, s35, 7")
    k.e("s_add_u32 s33, s33, s37")
    dma(896)
    for hl in range(4):
        for u in range(2):
            for T in range(2):
                trread(FR + ((hl * 2 + u) * 2 + T) * 4, (28 * hl + 16 * u) * 128 + T * 64)
    k.e("s_lshl_b32 s38, s35, 16")
    k.e(f"s_add_u32 s38, s38, {WS_WO}")
    k.e("s_lshl_b32 s37, s36, 13")
    k.e("s_add_u32 s40, s38, s37")
    k.e("s_add_u32 s41, s40, 32768")
    k.e("v_cmp_gt_u32 vcc, 32, v0")
    k.e("s_waitcnt lgkmcnt(0)")
    for hl in range(4):
        for T in range(2):
            r = FR + ((hl * 2 + 1) * 2 + T) * 4
            k.e(f"v_cndmask_b32 v{r+2}, 0, v{r+2}, vcc")
            k.e(f"v_cndmask_b32 v{r+3}, 0, v{r+3}, vcc")
    for s8 in range(8):
        if s8 == 4:
            k.e("s_add_u32 s40, s40, 4096")
            k.e("s_add_u32 s41, s41, 4096")
        for T in range(2):
            r = FR + (s8 * 2 + T) * 4
            k.e(f"buffer_store_dwordx4 v[{r}:{r+3}], v7, s[24:27], s{40+T} offen offset:{(s8%4)*1024}")
    k.e(f"s_branch {L_end}")

    k.e(f"{labels['wd']}:")
    srd(k, 28, 16, 1792 * 896)
    k.e(f"s_sub_u32 s32, s2, {B_WD}")
    k.e("s_lshr_b32 s35, s32, 4")
    k.e("s_and_b32 s36, s32, 15")
    k.e(f"s_mul_i32 s33, s36, {112*896}")
    k.e("s_lshl_b32 s37, s35, 7")
    k.e("s_add_u32 s33, s33, s37")
    dma(896)
    for ksl in range(7):
        for T in range(2):
            trread(FR + (ksl * 2 + T) * 4, ksl * 2048 + T * 64)
    k.e(f"s_mul_i32 s38, s35, {2*114688}")
    k.e(f"s_add_u32 s38, s38, {WS_WD}")
    k.e(f"s_mul_i32 s37, s36, {7*1024}")
    k.e("s_add_u32 s40, s38, s37")
    k.e("s_add_u32 s41, s40, 114688")
    k.e("s_waitcnt lgkmcnt(0)")
    for ksl in range(7):
        if ksl == 4:
            k.e("s_add_u32 s40, s40, 4096")
            k.e("s_add_u32 s41, s41, 4096")
        for T in range(2):
            r = FR + (ksl * 2 + T) * 4
            k.e(f"buffer_store_dwordx4 v[{r}:{r+3}], v7, s[24:27], s{40+T} offen offset:{(ksl%4)*1024}")
    k.e(f"s_branch {L_end}")

    k.e(f"{labels['x']}:")
    srd(k, 28, 4, S * 896)
    k.e(f"s_sub_u32 s32, s2, {B_X}")
    k.e("s_lshr_b32 s35, s32, 1")
    k.e("s_and_b32 s36, s32, 1")
    k.e("s_mul_i32 s33, s35, 28672")
    k.e("s_mul_i32 s37, s36, 448")
    k.e("s_add_u32 s34, s33, s37")
    k.e("v_and_b32 v4, 31, v0")
    k.e("s_movk_i32 s37, 896")
    k.e("v_mul_lo_u32 v4, v4, s37")
    k.e("v_lshlrev_b32 v3, 4, v1")
    k.e("v_add_u32 v4, v4, v3")
    for i in range(14):
        r = FR + i * 4
        k.e(f"buffer_load_dwordx4 v[{r}:{r+3}], v4, s[28:31], s34 offen offset:{i*32}")
    k.e("s_mul_i32 s37, s36, 14336")
    k.e("s_add_u32 s40, s33, s37")
    k.e(f"s_add_u32 s40, s40, {WS_X0}")
    for i in range(14):
        r = FR + i * 4
        k.e("s_waitcnt vmcnt(13)")
        k.e(f"v_permlane32_swap_b32 v{r}, v{r+2}")
        k.e(f"v_permlane32_swap_b32 v{r+1}, v{r+3}")
        if i and i % 4 == 0:
            k.e("s_add_u32 s40, s40, 4096")
        k.e(f"buffer_store_dwordx4 v[{r}:{r+3}], v7, s[24:27], s40 offen offset:{(i%4)*1024}")
    k.e(f"{L_end}:")
    k.e("s_endpgm")
    return k, dict(grid=N_UNITS, block=64, lds=PREP_LDS)
```

```python
from asmlib import Kernel
from layout import *
from k_lngemm import prologue, V_L16

VACC = 16
VRES = 80
VRING = 96
VT = 88


def build_splitk(name, aoff, woff, nks, resoff, outoff, final=False, depth=8):
    k = Kernel(name)
    KS = nks // 4
    depth = min(depth, KS)
    L_end = prologue(k, 224)
    if final:
        k.e(f"s_load_dwordx2 s[6:7], s[0:1], {KA_OUT}")
    k.e("s_lshr_b32 s13, s2, 5")
    k.e("s_and_b32 s14, s2, 31")
    k.e("s_lshr_b32 s15, s12, 1")
    k.e("s_and_b32 s16, s12, 1")
    k.e("s_lshl_b32 s17, s14, 1")
    k.e("s_add_u32 s17, s17, s15")
    k.e("s_xor_b32 s18, s17, 1")
    k.e("s_lshl_b32 s19, s13, 1")
    k.e("s_add_u32 s19, s19, s16")
    k.e("s_xor_b32 s20, s19, 1")
    k.e(f"s_mul_i32 s21, s12, {KS*1024}")
    for d, src, base in ((24, 17, aoff), (25, 18, aoff), (26, 19, woff), (27, 20, woff)):
        k.e(f"s_mul_i32 s{d}, s{src}, {nks*1024}")
        k.e(f"s_add_u32 s{d}, s{d}, s21")
        k.e(f"s_add_u32 s{d}, s{d}, {base}")
    k.e("s_mul_i32 s28, s17, 28")
    k.e("s_lshl_b32 s29, s19, 1")
    k.e("s_add_u32 s28, s28, s29")
    k.e("s_lshl_b32 s28, s28, 10")
    k.e(f"s_add_u32 s29, s28, {resoff}")

    def load(ks):
        if ks and ks % 4 == 0:
            for d in range(24, 28):
                k.e(f"s_add_u32 s{d}, s{d}, 4096")
        r = VRING + (ks % depth) * 16
        for f in range(4):
            k.vmem(f"buffer_load_dwordx4 v[{r+4*f}:{r+4*f+3}], v{V_L16}, s[8:11], s{24+f} offen offset:{(ks%4)*1024}", ks)

    for ks in range(depth):
        load(ks)
    for u in range(2):
        k.vmem(f"buffer_load_dwordx4 v[{VRES+4*u}:{VRES+4*u+3}], v{V_L16}, s[8:11], s29 offen offset:{u*1024}", "res")
    for j in range(1, 4):
        k.e(f"s_xor_b32 s30, s12, {j}")
        k.e("s_mul_i32 s30, s30, 12288")
        k.e(f"s_add_u32 s30, s30, {(j-1)*4096}")
        k.e(f"v_add_u32 v{2+j}, s30, v{V_L16}")
    k.e("s_mul_i32 s30, s12, 12288")
    k.e(f"v_add_u32 v6, s30, v{V_L16}")
    for ks in range(KS):
        k.wait_vm(ks)
        r = VRING + (ks % depth) * 16
        for j in range(4):
            a_, b_ = j & 1, j >> 1
            acc = VACC + j * 16
            c = "0" if ks == 0 else f"v[{acc}:{acc+15}]"
            k.e(f"v_mfma_f32_32x32x16_bf16 v[{acc}:{acc+15}], v[{r+8+4*a_}:{r+8+4*a_+3}], v[{r+4*b_}:{r+4*b_+3}], {c}")
        if ks + depth < KS:
            load(ks + depth)
    for j in range(1, 4):
        acc = VACC + j * 16
        for q in range(4):
            k.lds(f"ds_write_b128 v{2+j}, v[{acc+4*q}:{acc+4*q+3}] offset:{q*1024}", "w")
    k.wait_lg_all()
    k.e("s_barrier")
    R = VRING
    for i in range(12):
        k.lds(f"ds_read_b128 v[{R+4*i}:{R+4*i+3}], v6 offset:{i*1024}", i)
    k.wait_vm("res")
    for j in range(8):
        k.e(f"v_lshlrev_b32 v{VT}, 16, v{VRES+j}")
        k.e(f"v_and_b32 v{VT+1}, 0xffff0000, v{VRES+j}")
        k.e(f"v_add_f32 v{VACC+2*j}, v{VACC+2*j}, v{VT}")
        k.e(f"v_add_f32 v{VACC+2*j+1}, v{VACC+2*j+1}, v{VT+1}")
    for s in range(3):
        for q in range(4):
            k.wait_lg(s * 4 + q)
            for e in range(4):
                k.e(f"v_add_f32 v{VACC+4*q+e}, v{VACC+4*q+e}, v{R+16*s+4*q+e}")
    for j in range(8):
        k.e(f"v_cvt_pk_bf16_f32 v{VACC+j}, v{VACC+2*j}, v{VACC+2*j+1}")
    if not final:
        k.e(f"s_add_u32 s29, s28, {outoff}")
        k.vmem(f"buffer_store_dwordx4 v[{VACC}:{VACC+3}], v{V_L16}, s[8:11], s29 offen", "st")
        k.vmem(f"buffer_store_dwordx4 v[{VACC+4}:{VACC+7}], v{V_L16}, s[8:11], s29 offen offset:1024", "st")
    else:
        k.e("s_mov_b32 s32, s6")
        k.e("s_mov_b32 s33, s7")
        k.e(f"s_mov_b32 s34, {S*D*2}")
        k.e("s_mov_b32 s35, 0x00020000")
        k.e(f"v_and_b32 v{VT}, 31, v0")
        k.e("s_movk_i32 s30, 896")
        k.e(f"v_mul_lo_u32 v{VT}, v{VT}, s30")
        k.e(f"v_lshrrev_b32 v{VT+1}, 5, v0")
        k.e(f"v_lshlrev_b32 v{VT+1}, 4, v{VT+1}")
        k.e(f"v_add_u32 v{VT}, v{VT}, v{VT+1}")
        k.e("s_mul_i32 s30, s17, 28672")
        k.e("s_lshl_b32 s31, s19, 6")
        k.e("s_add_u32 s30, s30, s31")
        for p in range(2):
            b = VACC + 4 * p
            k.e(f"v_permlane32_swap_b32 v{b}, v{b+2}")
            k.e(f"v_permlane32_swap_b32 v{b+1}, v{b+3}")
            k.vmem(f"buffer_store_dwordx4 v[{b}:{b+3}], v{VT}, s[32:35], s30 offen offset:{p*32}", "st")
    k.e(f"{L_end}:")
    k.e("s_endpgm")
    return k, dict(grid=224, block=256, lds=49152)
```

```python
S, D, H, DH, WIN, F = 2048, 448, 16, 28, 256, 1792
MB = 1 << 20
TILE = 29 * 1024

WS_WQKV = 0 * MB
WS_WGU = 2 * MB
WS_WO = 6 * MB
WS_WD = 7 * MB
WS_X0 = 10 * MB
WS_X1 = 12 * MB
WS_X2 = 14 * MB
WS_X3 = 16 * MB
WS_Q = 18 * MB
WS_K = 20 * MB
WS_V = 22 * MB
WS_O = 24 * MB
WS_H = 26 * MB
WS_END = 34 * MB
WS_BYTES = 268435456

KA_X, KA_WQKV, KA_WO, KA_BX, KA_WG, KA_WU, KA_WD, KA_OUT, KA_DBG, KA_WS = [8 * i for i in range(10)]
```

```python
from layout import *
from k_prep import build_prep
from k_lngemm import build_lngemm
from k_attn import build_attn
from k_splitk import build_splitk

def sequence():
    seq = []
    seq.append(build_prep())
    attn = build_attn("attn_kernel")
    seq.append(build_lngemm("qkv1_kernel", "qkv", WS_X0))
    seq.append(attn)
    seq.append(build_splitk("wo1_kernel", WS_O, WS_WO, 32, WS_X0, WS_X1))
    seq.append(build_lngemm("gu1_kernel", "gu", WS_X1))
    seq.append(build_splitk("down1_kernel", WS_H, WS_WD, 112, WS_X1, WS_X2))
    seq.append(build_lngemm("qkv2_kernel", "qkv", WS_X2))
    seq.append(attn)
    seq.append(build_splitk("wo2_kernel", WS_O, WS_WO, 32, WS_X2, WS_X3))
    seq.append(build_lngemm("gu2_kernel", "gu", WS_X3))
    seq.append(build_splitk("down2_kernel", WS_H, WS_WD, 112, WS_X3, 0, final=True))
    return seq
```

```python
import sys, os, importlib
sys.path.insert(0, os.path.dirname(os.path.abspath(__file__)))
from layout import *

HEADER = """; Kernarg layout for this problem (80 bytes, ptrs only, base s[0:1]):
"""

def build(seq):
    out = [HEADER]
    for k, li in seq:
        out.append(f"; @launch kernel={k.name} grid=({li['grid']},1,1) block=({li['block']},1,1) lds={li['lds']}\n")
    out.append('.amdgcn_target "amdgcn-amd-amdhsa--gfx950"\n.text\n')
    seen = []
    for k, li in seq:
        if k not in seen:
            seen.append(k)
    texts = [k.text() for k in seen]
    out += texts
    out.append('.section .rodata,"a"\n')
    for k in seen:
        out.append(k.descriptor())
    return "".join(out)

if __name__ == "__main__":
    import pipeline
    seq = pipeline.sequence()
    txt = build(seq)
    dst = sys.argv[1] if len(sys.argv) > 1 else "interleave_layers__sliding_block__geglu_ffn__prompt.s"
    open(dst, "w").write(txt)
    print("wrote", dst, len(txt), "bytes")
```

```python
import sys
sys.path.insert(0, 'gen')
import gen, pipeline
from asmlib import Kernel
def empty(name):
    k = Kernel(name)
    k.e("s_endpgm")
    return k, dict(grid=256, block=256, lds=0)
seq = pipeline.sequence()
e = empty("nop_kernel")
seq2 = []
for s in seq:
    seq2.append(s); seq2.append(e)
open('v_nop.s','w').write(gen.build(seq2))
```

```python
import re

TRANS = ("v_exp_f32", "v_log_f32", "v_rcp_f32", "v_rsq_f32", "v_sqrt_f32", "v_sin_f32", "v_cos_f32")


def _regs(tok):
    tok = tok.strip()
    tok = re.sub(r"^-", "", tok)
    m = re.match(r"^abs\((.*)\)$", tok)
    if m:
        tok = m.group(1)
    m = re.match(r"^([vas])\[(\d+):(\d+)\]$", tok)
    if m:
        return {(m.group(1), i) for i in range(int(m.group(2)), int(m.group(3)) + 1)}
    m = re.match(r"^([vas])(\d+)$", tok)
    if m:
        return {(m.group(1), int(m.group(2)))}
    if tok in ("vcc", "exec", "m0", "scc"):
        return {(tok, 0)}
    if tok in ("vcc_lo", "vcc_hi"):
        return {("vcc", 0)}
    return set()


class Ins:
    __slots__ = ("text", "op", "dst", "src", "kind", "passes", "srcc", "states", "is_label")

    def __init__(self, text):
        self.text = text
        self.is_label = text.rstrip().endswith(":")
        self.op = ""
        self.dst = set()
        self.src = set()
        self.srcc = set()
        self.kind = "other"
        self.passes = 0
        self.states = 1
        if self.is_label:
            self.states = 0
            self.kind = "label"
            return
        body = text.split(";")[0].strip()
        if not body or body.startswith("."):
            self.states = 0
            self.kind = "dir"
            return
        parts = body.split(None, 1)
        op = parts[0]
        self.op = op
        rest = parts[1] if len(parts) > 1 else ""
        ops = [o.strip() for o in re.split(r",(?![^\[]*\])", rest)] if rest else []
        clean = []
        for o in ops:
            clean.append(o.split()[0] if o else o)
        ops = clean
        R = [_regs(o) for o in ops]
        if op == "s_nop":
            self.states = int(ops[0], 0) + 1
            self.kind = "salu"
        elif op.startswith("v_mfma"):
            self.kind = "mfma"
            self.passes = 8 if "32x32x16" in op else 4
            self.dst = R[0]
            self.src = R[1] | R[2] | R[3]
            self.srcc = R[3]
        elif op.startswith("buffer_store") or op.startswith("global_store"):
            self.kind = "vmem"
            for r in R:
                self.src |= r
        elif op.startswith("buffer_load") or op.startswith("global_load"):
            self.kind = "vmem"
            if " lds" in body or "_lds_" in op:
                for r in R:
                    self.src |= r
                self.src.add(("m0", 0))
            else:
                self.dst = R[0]
                for r in R[1:]:
                    self.src |= r
        elif op.startswith("buffer_atomic") or op.startswith("global_atomic"):
            self.kind = "vmem"
            for r in R:
                self.src |= r
        elif op.startswith("ds_write") or op == "ds_add_u32":
            self.kind = "ds"
            for r in R:
                self.src |= r
        elif op.startswith("ds_"):
            self.kind = "ds"
            self.dst = R[0]
            for r in R[1:]:
                self.src |= r
        elif op.startswith("v_"):
            self.kind = "valu"
            if op.startswith("v_permlane") and "swap" in op:
                self.dst = R[0] | R[1]
                self.src = R[0] | R[1]
            elif op.startswith("v_cmp"):
                self.dst = R[0]
                for r in R[1:]:
                    self.src |= r
            elif op.startswith("v_add_co") or op.startswith("v_addc_co") or op.startswith("v_sub_co"):
                self.dst = R[0] | R[1]
                for r in R[2:]:
                    self.src |= r
            else:
                self.dst = R[0]
                for r in R[1:]:
                    self.src |= r
                if op.startswith("v_fmac") or op.startswith("v_dot2c") or op.startswith("v_writelane"):
                    self.src |= R[0]
        elif op.startswith("s_"):
            self.kind = "salu"
            if op.startswith("s_cmp") or op.startswith("s_cbranch") or op in (
                "s_branch", "s_waitcnt", "s_barrier", "s_endpgm", "s_setprio", "s_sleep"):
                for r in R:
                    self.src |= r
            else:
                if R:
                    self.dst = R[0]
                for r in R[1:]:
                    self.src |= r


def _vonly(s):
    return {r for r in s if r[0] in ("v", "a")}


def _sonly(s):
    return {r for r in s if r[0] in ("s", "vcc")}


def required_gap(p, c):
    need = 0
    pv = _vonly(p.dst)
    if p.kind == "valu":
        is_dot = p.op.startswith("v_dot")
        if c.kind == "mfma" and pv & c.src:
            need = max(need, 3 if is_dot else 2)
        if c.kind == "valu":
            if p.op in TRANS and c.op not in TRANS and pv & (c.src | c.dst):
                need = max(need, 1)
            if p.op in TRANS and c.op in TRANS and pv & c.src:
                need = max(need, 1)
            if c.op.startswith("v_permlane") and pv & c.src:
                need = max(need, 2)
            if (c.op.startswith("v_readlane") or c.op.startswith("v_readfirstlane")) and pv & c.src:
                need = max(need, 1)
            if "dpp" in c.text and pv & c.src:
                need = max(need, 2)
            if ("sdwa" in p.text or "_sel:" in p.text) and pv & (c.src | c.dst):
                need = max(need, 1)
            if is_dot and pv & (c.src | c.dst):
                if c.op == p.op:
                    ab = c.src - c.dst
                    if pv & ab:
                        need = max(need, 3)
                else:
                    need = max(need, 3)
            ps = _sonly(p.dst)
            if ps & c.src:
                need = max(need, 4 if c.op.startswith("v_readlane") or c.op.startswith("v_writelane") else 2)
        if is_dot and c.kind in ("vmem", "ds") and pv & c.src:
            need = max(need, 3)
        if c.kind == "vmem" and _sonly(p.dst) & c.src:
            need = max(need, 5)
        if c.kind == "salu" and _sonly(p.dst) & c.src:
            need = max(need, 1)
    if p.kind == "mfma":
        big = 12 if p.passes == 8 else 8
        if c.kind == "mfma":
            ab = c.src - c.srcc
            if pv & ab:
                need = max(need, big)
            if pv & c.srcc and not (c.srcc == p.dst and c.passes == p.passes):
                need = max(need, 10 if p.passes == 8 else 6)
            if pv & c.dst and not (c.dst == p.dst):
                need = max(need, big)
        elif c.kind in ("valu", "vmem", "ds"):
            if pv & (c.src | c.dst):
                need = max(need, big)
        if c.kind == "valu" and _vonly(p.srcc) & c.dst:
            need = max(need, 7 if p.passes == 8 else 3)
    if p.kind == "salu" and ("m0", 0) in p.dst and c.kind == "vmem" and ("m0", 0) in c.src:
        need = max(need, 1)
    if p.kind == "vmem" and ("store" in p.op) and ("x4" in p.op or "x3" in p.op):
        if c.kind != "vmem" and _vonly(p.src) & c.dst:
            need = max(need, 2)
    return need


class Kernel:
    def __init__(self, name):
        self.name = name
        self.ins = []
        self.vm = []
        self.lg = []
        self.nlabel = 0
        self.issued_tags = set()

    def e(self, text):
        for line in text.split("\n"):
            line = line.strip()
            if line:
                self.ins.append(Ins(line))

    def label(self, base="L"):
        self.nlabel += 1
        return f"{self.name}_{base}{self.nlabel}"

    def phase_mark(self):
        self.issued_tags = set()

    def issued_tags_phase(self):
        return self.issued_tags

    PROFILE = False
    prof_slot = 0

    def stamp(self, name, real=False):
        if not Kernel.PROFILE:
            return
        if not hasattr(self, "stamps"):
            self.stamps = []
        n = len(self.stamps)
        assert n < 18
        r = 64 + 2 * n
        self.e("s_waitcnt lgkmcnt(0)")
        self.lg = []
        self.e(f"{'s_memrealtime' if real else 's_memtime'} s[{r}:{r+1}]")
        self.e("s_waitcnt lgkmcnt(0)")
        self.stamps.append(name)

    def stamp_flush(self, slot, wsdbg):
        if not Kernel.PROFILE:
            return
        n = len(self.stamps)
        self.e("s_lshl_b32 s100, s2, 2")
        self.e("s_add_u32 s100, s100, s12")
        self.e("s_lshl_b32 s100, s100, 7")
        self.e(f"s_add_u32 s100, s100, {wsdbg + slot*4096*128}")
        self.e("v_mov_b32 v1, 0")
        for i in range(n):
            self.e(f"v_mov_b32 v2, s{64+2*i}")
            self.e(f"buffer_store_dword v2, v1, s[8:11], s100 offen offset:{4*i}")
            self.e("s_nop 1")

    def vmem(self, text, tag=None):
        self.e(text)
        self.vm.append(tag)
        self.issued_tags.add(tag)

    def wait_vm(self, tag):
        idxs = [i for i, t in enumerate(self.vm) if t == tag]
        if not idxs:
            return
        idx = max(idxs)
        n = len(self.vm) - 1 - idx
        assert n <= 63
        self.e(f"s_waitcnt vmcnt({n})")
        self.vm = self.vm[idx + 1:]

    def wait_vm_all(self):
        self.e("s_waitcnt vmcnt(0)")
        self.vm = []

    def lds(self, text, tag=None):
        self.e(text)
        self.lg.append(tag)

    def wait_lg(self, tag):
        idxs = [i for i, t in enumerate(self.lg) if t == tag]
        if not idxs:
            return
        idx = max(idxs)
        n = len(self.lg) - 1 - idx
        assert n <= 15, n
        self.e(f"s_waitcnt lgkmcnt({n})")
        self.lg = self.lg[idx + 1:]

    def wait_lg_all(self):
        self.e("s_waitcnt lgkmcnt(0)")
        self.lg = []

    def finalize(self):
        out = []
        WINDOW = 14
        for ins in self.ins:
            if ins.kind in ("label", "dir"):
                out.append(ins)
                continue
            need_extra = 0
            dist = 0
            for p in reversed(out):
                if p.kind == "dir":
                    continue
                if p.kind == "label":
                    continue
                g = required_gap(p, ins)
                if g > dist:
                    need_extra = max(need_extra, g - dist)
                dist += p.states
                if dist >= WINDOW:
                    break
            while need_extra > 0:
                n = min(need_extra, 16)
                out.append(Ins(f"s_nop {n - 1}"))
                need_extra -= n
            out.append(ins)
        self.ins = out

    def max_regs(self):
        mv = ma = ms = -1
        for i in self.ins:
            for r in i.dst | i.src:
                if r[0] == "v":
                    mv = max(mv, r[1])
                elif r[0] == "a":
                    ma = max(ma, r[1])
                elif r[0] == "s":
                    ms = max(ms, r[1])
        return mv, ma, ms

    def text(self):
        self.finalize()
        s = [f".globl {self.name}", ".p2align 8", f".type {self.name},@function", f"{self.name}:"]
        for i in self.ins:
            s.append(i.text if i.is_label else "    " + i.text)
        return "\n".join(s) + "\n"

    def descriptor(self):
        mv, ma, ms = self.max_regs()
        acc_off = ((mv + 1 + 3) // 4) * 4
        acc_off = max(acc_off, 4)
        nfv = acc_off + (ma + 1) if ma >= 0 else mv + 1
        nfs = max(ms + 1, 8)
        return f""".p2align 6
.amdhsa_kernel {self.name}
  .amdhsa_next_free_vgpr {nfv}
  .amdhsa_next_free_sgpr {nfs}
  .amdhsa_accum_offset {acc_off}
  .amdhsa_group_segment_fixed_size 0
  .amdhsa_kernarg_size 80
  .amdhsa_user_sgpr_count 2
  .amdhsa_user_sgpr_kernarg_segment_ptr 1
  .amdhsa_system_sgpr_workgroup_id_x 1
.end_amdhsa_kernel
"""
```

```python
from asmlib import Kernel
from layout import *

N_GU, N_QKV, N_WO, N_WD, N_X = 112, 96, 28, 112, 128
B_G = 0
B_U = B_G + N_GU
B_QKV = B_U + N_GU
B_WO = B_QKV + N_QKV
B_WD = B_WO + N_WO
B_X = B_WD + N_WD
B_Z = B_X + N_X
N_UNITS = B_Z + 11
PREP_LDS = 15360


def srd(k, d, base, nbytes):
    k.e(f"s_mov_b32 s{d}, s{base}")
    k.e(f"s_mov_b32 s{d+1}, s{base+1}")
    k.e(f"s_mov_b32 s{d+2}, {nbytes}")
    k.e(f"s_mov_b32 s{d+3}, 0x00020000")


def build_prep():
    k = Kernel("prep_kernel")
    L_end = k.label("end")
    k.e(f"s_cmp_ge_u32 s2, {N_UNITS}")
    k.e(f"s_cbranch_scc1 {L_end}")
    k.e("s_load_dwordx16 s[4:19], s[0:1], 0")
    k.e(f"s_load_dwordx2 s[20:21], s[0:1], {KA_WS}")
    k.e("v_lshrrev_b32 v1, 5, v0")
    k.e("v_lshlrev_b32 v2, 2, v1")
    k.e("v_bfe_u32 v3, v0, 2, 2")
    k.e("v_add_u32 v2, v2, v3")
    k.e("v_lshlrev_b32 v2, 7, v2")
    k.e("v_bfe_u32 v3, v0, 4, 1")
    k.e("v_lshlrev_b32 v4, 5, v3")
    k.e("v_add_u32 v2, v2, v4")
    k.e("v_and_b32 v4, 3, v0")
    k.e("v_lshlrev_b32 v4, 3, v4")
    k.e("v_add_u32 v2, v2, v4")
    k.e("v_lshrrev_b32 v5, 3, v0")
    k.e("v_and_b32 v6, 7, v0")
    k.e("v_lshlrev_b32 v6, 4, v6")
    k.e("v_lshlrev_b32 v7, 4, v0")
    k.e("v_mov_b32 v8, 0x3f803f80")
    k.e("s_waitcnt lgkmcnt(0)")
    srd(k, 24, 20, WS_BYTES)
    labels = {n: k.label(n) for n in ("gate", "up", "qkv", "wo", "wd", "x", "z")}
    for n, b in (("z", B_Z), ("x", B_X), ("wd", B_WD), ("wo", B_WO), ("qkv", B_QKV), ("up", B_U)):
        k.e(f"s_cmp_ge_u32 s2, {b}")
        k.e(f"s_cbranch_scc1 {labels[n]}")
    k.e(f"s_branch {labels['gate']}")

    FR = 16

    def dma(pitch):
        k.e(f"s_mov_b32 s34, {pitch}")
        k.e("v_mul_lo_u32 v9, v5, s34")
        k.e("v_add_u32 v9, v9, v6")
        for i in range(14):
            k.e(f"s_mov_b32 m0, {i*1024}")
            k.e(f"buffer_load_dwordx4 v9, s[28:31], s33 offen lds")
            if i < 13:
                k.e(f"s_add_u32 s33, s33, {8*pitch}")
        k.e("s_waitcnt vmcnt(0)")

    def trread(reg, off):
        k.e(f"ds_read_b64_tr_b16 v[{reg}:{reg+1}], v2 offset:{off}")
        k.e(f"ds_read_b64_tr_b16 v[{reg+2}:{reg+3}], v2 offset:{off+1024}")

    def colsum_ext(nfr_per_T, vext, soff_reg_T):
        for T in range(2):
            acc = 10 + T
            k.e(f"v_mov_b32 v{acc}, 0")
            for ksl in range(7):
                r = FR + (ksl * 2 + T) * 4
                for j in range(4):
                    k.e(f"v_dot2c_f32_bf16 v{acc}, v{r+j}, v8")
        for T in range(2):
            acc = 10 + T
            k.e(f"v_mov_b32 v12, v{acc}")
            k.e(f"v_permlane32_swap_b32 v12, v{acc}")
            k.e(f"v_add_f32 v{acc}, v12, v{acc}")
            k.e(f"v_cvt_pk_bf16_f32 v12, v{acc}, v{acc}")
            k.e("v_lshlrev_b32 v12, 16, v12")
            k.e(f"v_sub_f32 v13, v{acc}, v12")
            k.e(f"v_cvt_pk_bf16_f32 v14, v{acc}, v13")
            k.e("v_mov_b32 v15, v14")
            k.e(f"buffer_store_dwordx2 v[14:15], v{vext}, s[24:27], s{soff_reg_T[T]} offen")
            k.e("s_nop 1")

    for half, name, base, ptr in ((0, "gate", B_G, 12), (1, "up", B_U, 14)):
        k.e(f"{labels[name]}:")
        srd(k, 28, ptr, 448 * 3584)
        k.e(f"s_sub_u32 s32, s2, {base}")
        k.e("s_lshr_b32 s35, s32, 2")
        k.e("s_and_b32 s36, s32, 3")
        k.e(f"s_mul_i32 s33, s36, {112*3584}")
        k.e("s_lshl_b32 s37, s35, 7")
        k.e("s_add_u32 s33, s33, s37")
        dma(3584)
        for ksl in range(7):
            for T in range(2):
                trread(FR + (ksl * 2 + T) * 4, ksl * 2048 + T * 64)
        k.e(f"s_mov_b32 s34, {TILE}")
        k.e("v_mul_lo_u32 v3, v3, s34")
        k.e("v_and_b32 v4, 15, v0")
        k.e(f"v_add_u32 v4, {half*16}, v4")
        k.e("v_lshlrev_b32 v4, 4, v4")
        k.e("v_add_u32 v4, v4, v3")
        k.e("v_lshlrev_b32 v3, 9, v1")
        k.e("v_add_u32 v3, v3, v4")
        k.e(f"s_mul_i32 s38, s35, {4*TILE}")
        k.e(f"s_add_u32 s38, s38, {WS_WGU}")
        k.e(f"s_add_u32 s39, s38, {2*TILE}")
        k.e(f"s_mul_i32 s37, s36, {7*1024}")
        k.e("s_add_u32 s40, s38, s37")
        k.e("s_add_u32 s41, s39, s37")
        k.e("s_lshr_b32 s37, s36, 1")
        k.e("s_lshl_b32 s37, s37, 9")
        k.e("s_and_b32 s42, s36, 1")
        k.e("s_lshl_b32 s42, s42, 3")
        k.e("s_add_u32 s37, s37, s42")
        k.e(f"s_add_u32 s37, s37, {28*1024}")
        k.e("s_add_u32 s42, s38, s37")
        k.e("s_add_u32 s43, s39, s37")
        k.e("s_waitcnt lgkmcnt(0)")
        for ksl in range(7):
            if ksl == 4:
                k.e("s_add_u32 s40, s40, 4096")
                k.e("s_add_u32 s41, s41, 4096")
            for T in range(2):
                r = FR + (ksl * 2 + T) * 4
                k.e(f"buffer_store_dwordx4 v[{r}:{r+3}], v3, s[24:27], s{40+T} offen offset:{(ksl%4)*1024}")
        colsum_ext(7, 4, (42, 43))
        k.e(f"s_branch {L_end}")

    k.e(f"{labels['qkv']}:")
    srd(k, 28, 6, 448 * 2688)
    k.e(f"s_sub_u32 s32, s2, {B_QKV}")
    k.e("s_lshr_b32 s35, s32, 5")
    k.e("s_bfe_u32 s44, s32, 0x30002")
    k.e("s_and_b32 s36, s32, 3")
    k.e(f"s_mul_i32 s33, s36, {112*2688}")
    k.e("s_mul_i32 s37, s35, 896")
    k.e("s_add_u32 s33, s33, s37")
    k.e("s_mul_i32 s37, s44, 112")
    k.e("s_add_u32 s33, s33, s37")
    dma(2688)
    for ksl in range(7):
        for T in range(2):
            trread(FR + (ksl * 2 + T) * 4, ksl * 2048 + T * 56)
    k.e(f"s_mul_i32 s38, s44, {6*TILE}")
    k.e(f"s_mul_i32 s37, s35, {TILE}")
    k.e("s_add_u32 s38, s38, s37")
    k.e(f"s_add_u32 s38, s38, {WS_WQKV}")
    k.e(f"s_add_u32 s39, s38, {3*TILE}")
    k.e(f"s_mul_i32 s37, s36, {7*1024}")
    k.e("s_add_u32 s40, s38, s37")
    k.e("s_add_u32 s41, s39, s37")
    k.e("s_lshr_b32 s37, s36, 1")
    k.e("s_lshl_b32 s37, s37, 9")
    k.e("s_and_b32 s42, s36, 1")
    k.e("s_lshl_b32 s42, s42, 3")
    k.e("s_add_u32 s37, s37, s42")
    k.e(f"s_add_u32 s37, s37, {28*1024}")
    k.e("s_add_u32 s42, s38, s37")
    k.e("s_add_u32 s43, s39, s37")
    k.e("v_and_b32 v4, 31, v0")
    k.e("v_cmp_gt_u32 vcc, 28, v4")
    k.e("v_lshlrev_b32 v4, 4, v4")
    k.e("s_waitcnt lgkmcnt(0)")
    for i in range(14 * 4):
        k.e(f"v_cndmask_b32 v{FR+i}, 0, v{FR+i}, vcc")
    for ksl in range(7):
        if ksl == 4:
            k.e("s_add_u32 s40, s40, 4096")
            k.e("s_add_u32 s41, s41, 4096")
        for T in range(2):
            r = FR + (ksl * 2 + T) * 4
            k.e(f"buffer_store_dwordx4 v[{r}:{r+3}], v7, s[24:27], s{40+T} offen offset:{(ksl%4)*1024}")
    colsum_ext(7, 4, (42, 43))
    k.e(f"s_branch {L_end}")

    k.e(f"{labels['wo']}:")
    srd(k, 28, 8, 448 * 896)
    k.e(f"s_sub_u32 s32, s2, {B_WO}")
    k.e("s_lshr_b32 s35, s32, 2")
    k.e("s_and_b32 s36, s32, 3")
    k.e(f"s_mul_i32 s33, s36, {112*896}")
    k.e("s_lshl_b32 s37, s35, 7")
    k.e("s_add_u32 s33, s33, s37")
    dma(896)
    for hl in range(4):
        for u in range(2):
            for T in range(2):
                trread(FR + ((hl * 2 + u) * 2 + T) * 4, (28 * hl + 16 * u) * 128 + T * 64)
    k.e("s_lshl_b32 s38, s35, 16")
    k.e(f"s_add_u32 s38, s38, {WS_WO}")
    k.e("s_lshl_b32 s37, s36, 13")
    k.e("s_add_u32 s40, s38, s37")
    k.e("s_add_u32 s41, s40, 32768")
    k.e("v_cmp_gt_u32 vcc, 32, v0")
    k.e("s_waitcnt lgkmcnt(0)")
    for hl in range(4):
        for T in range(2):
            r = FR + ((hl * 2 + 1) * 2 + T) * 4
            k.e(f"v_cndmask_b32 v{r+2}, 0, v{r+2}, vcc")
            k.e(f"v_cndmask_b32 v{r+3}, 0, v{r+3}, vcc")
    for s8 in range(8):
        if s8 == 4:
            k.e("s_add_u32 s40, s40, 4096")
            k.e("s_add_u32 s41, s41, 4096")
        for T in range(2):
            r = FR + (s8 * 2 + T) * 4
            k.e(f"buffer_store_dwordx4 v[{r}:{r+3}], v7, s[24:27], s{40+T} offen offset:{(s8%4)*1024}")
    k.e(f"s_branch {L_end}")

    k.e(f"{labels['wd']}:")
    srd(k, 28, 16, 1792 * 896)
    k.e(f"s_sub_u32 s32, s2, {B_WD}")
    k.e("s_lshr_b32 s35, s32, 4")
    k.e("s_and_b32 s36, s32, 15")
    k.e(f"s_mul_i32 s33, s36, {112*896}")
    k.e("s_lshl_b32 s37, s35, 7")
    k.e("s_add_u32 s33, s33, s37")
    dma(896)
    for ksl in range(7):
        for T in range(2):
            trread(FR + (ksl * 2 + T) * 4, ksl * 2048 + T * 64)
    k.e(f"s_mul_i32 s38, s35, {2*114688}")
    k.e(f"s_add_u32 s38, s38, {WS_WD}")
    k.e("s_lshl_b32 s37, s36, 12")
    k.e("s_add_u32 s40, s38, s37")
    k.e("s_add_u32 s41, s40, 114688")
    k.e("s_mul_i32 s37, s36, 3072")
    k.e("s_add_u32 s42, s38, s37")
    k.e("s_add_u32 s42, s42, 65536")
    k.e("s_add_u32 s43, s42, 114688")
    k.e("s_waitcnt lgkmcnt(0)")
    for ksl in range(7):
        for T in range(2):
            r = FR + (ksl * 2 + T) * 4
            k.e(f"buffer_store_dwordx4 v[{r}:{r+3}], v7, s[24:27], s{40+T+2*(ksl//4)} offen offset:{(ksl%4)*1024}")
    k.e(f"s_branch {L_end}")

    k.e(f"{labels['z']}:")
    k.e(f"s_sub_u32 s32, s2, {B_Z}")
    k.e("s_lshl_b32 s33, s32, 14")
    k.e(f"s_add_u32 s33, s33, {WS_CNT}")
    k.e("v_lshlrev_b32 v4, 8, v0")
    k.e("v_mov_b32 v10, 0")
    k.e("buffer_store_dword v10, v4, s[24:27], s33 offen")
    k.e(f"s_branch {L_end}")

    k.e(f"{labels['x']}:")
    srd(k, 28, 4, S * 896)
    k.e(f"s_sub_u32 s32, s2, {B_X}")
    k.e("s_lshr_b32 s35, s32, 1")
    k.e("s_and_b32 s36, s32, 1")
    k.e("s_mul_i32 s33, s35, 28672")
    k.e("s_mul_i32 s37, s36, 448")
    k.e("s_add_u32 s34, s33, s37")
    k.e("v_and_b32 v4, 31, v0")
    k.e("s_movk_i32 s37, 896")
    k.e("v_mul_lo_u32 v4, v4, s37")
    k.e("v_lshlrev_b32 v3, 4, v1")
    k.e("v_add_u32 v4, v4, v3")
    for i in range(14):
        r = FR + i * 4
        k.e(f"buffer_load_dwordx4 v[{r}:{r+3}], v4, s[28:31], s34 offen offset:{i*32}")
    k.e("s_mul_i32 s37, s36, 14336")
    k.e("s_add_u32 s40, s33, s37")
    k.e(f"s_add_u32 s40, s40, {WS_X0}")
    k.e("v_mov_b32 v10, 0")
    k.e("v_mov_b32 v11, 0")
    for i in range(14):
        r = FR + i * 4
        k.e("s_waitcnt vmcnt(13)")
        k.e(f"v_permlane32_swap_b32 v{r}, v{r+2}")
        k.e(f"v_permlane32_swap_b32 v{r+1}, v{r+3}")
        if i and i % 4 == 0:
            k.e("s_add_u32 s40, s40, 4096")
        k.e(f"buffer_store_dwordx4 v[{r}:{r+3}], v7, s[24:27], s40 offen offset:{(i%4)*1024}")
        for j in range(4):
            k.e(f"v_dot2c_f32_bf16 v10, v{r+j}, v8")
            k.e(f"v_dot2c_f32_bf16 v11, v{r+j}, v{r+j}")
    k.e("v_mov_b32 v12, v10")
    k.e("v_mov_b32 v13, v11")
    k.e("v_permlane32_swap_b32 v12, v10")
    k.e("v_permlane32_swap_b32 v13, v11")
    k.e("v_add_f32 v10, v12, v10")
    k.e("v_add_f32 v11, v13, v11")
    k.e("v_cmp_gt_u32 vcc, 32, v0")
    k.e("s_mul_i32 s37, s35, 3584")
    k.e("s_mul_i32 s38, s36, 1792")
    k.e("s_add_u32 s37, s37, s38")
    k.e(f"s_add_u32 s37, s37, {WS_ST0}")
    k.e("v_cndmask_b32 v10, 0, v10, vcc")
    k.e("v_cndmask_b32 v11, 0, v11, vcc")
    k.e("v_lshlrev_b32 v12, 3, v0")
    k.e("v_mov_b32 v14, 0")
    k.e("v_mov_b32 v15, 0")
    k.e("buffer_store_dwordx2 v[10:11], v12, s[24:27], s37 offen")
    k.e("buffer_store_dwordx2 v[14:15], v12, s[24:27], s37 offen offset:512")
    k.e("buffer_store_dwordx2 v[14:15], v12, s[24:27], s37 offen offset:1024")
    k.e("buffer_store_dwordx2 v[14:15], v12, s[24:27], s37 offen offset:1280")
    k.e(f"{L_end}:")
    k.e("s_endpgm")
    return k, dict(grid=N_UNITS, block=64, lds=PREP_LDS)
```

```python
S, D, H, DH, WIN, F = 2048, 448, 16, 28, 256, 1792
MB = 1 << 20
TILE = 29 * 1024

WS_WQKV = 0 * MB
WS_WGU = 2 * MB
WS_WO = 6 * MB
WS_WD = 7 * MB
WS_X0 = 10 * MB
WS_X1 = 12 * MB
WS_X2 = 14 * MB
WS_X3 = 16 * MB
WS_Q = 18 * MB
WS_K = 20 * MB
WS_V = 22 * MB
WS_O = 24 * MB
WS_H = 26 * MB
WS_ST0 = 34 * MB
WS_ST1 = WS_ST0 + 256 * 1024
WS_ST2 = WS_ST0 + 512 * 1024
WS_ST3 = WS_ST0 + 768 * 1024
WS_END = 36 * MB
WS_KV = [36 * MB, 41 * MB]
WS_OL = [46 * MB, 48 * MB]
WS_HL = [50 * MB, 58 * MB]
WS_CNT = 66 * MB
WS_END2 = 68 * MB
CNT_Q = [0, 256]
CNT_A = [512, 528]
CNT_W = [544, 560]
CNT_G = [576, 592]
CNT_D = [608, 624]
CNT_G2 = [640, 656]
N_CNT = 672
WS_DBG = 96 * MB
WS_BYTES = 268435456

KA_X, KA_WQKV, KA_WO, KA_BX, KA_WG, KA_WU, KA_WD, KA_OUT, KA_DBG, KA_WS = [8 * i for i in range(10)]
```

```python
import struct
from asmlib import Kernel, Ins
from layout import *


def f2u(x):
    return "0x%08x" % struct.unpack("<I", struct.pack("<f", x))[0]


QSCALE = (DH ** -0.5) * 1.4426950408889634
C1 = -2.0 * 0.7978845608028654 * 1.4426950408889634
C3 = C1 * 0.044715
NEG = "0xf149f2ca"
LDS_BYTES = 163840
KVWIN = 3 * TILE
SCR = KVWIN + 12 * 4096
SYNCW = LDS_BYTES - 64

S_WAVE, S_W4, S_W1K, S_W256, S_XCD, S_J = 12, 13, 14, 15, 16, 17
S_RBQ, S_H, S_RBG, S_CB, S_MB, S_NB, S_ACT = 18, 19, 20, 21, 22, 23, 24
S_TO = 25
S_ROTQ = 26
S_ROTG = 33
ST = 40
V_L16, V_L4 = 1, 2
import os
SC = " sc1"
SCL = os.environ.get("SCL", " sc1")
DOWN_WBASE = 2 * TILE
DOWN_PERM = [11, 0, 1, 2, 3, 4, 5, 6, 7, 8, 9, 10]


class Mega:
    def __init__(self, name, stop_after=99):
        self.name = name
        self.P = Kernel(name)
        self.C = Kernel(name + "_c")
        self.L = Kernel(name + "_l")
        self.bars = {"C": [], "L": []}
        self.stop_after = stop_after
        self.nslot = 0

    def bar(self, who, name):
        k = self.C if who == "C" else self.L
        k.e("s_barrier")
        self.bars[who].append(name)

    VP = 252

    def poll(self, k, soff, target, vtmp=None, early=False):
        lp, dn, to = k.label("poll"), k.label("pdone"), k.label("pto")
        VP = self.VP

        def check(r):
            k.e(f"v_readfirstlane_b32 s62, v{r}")
            k.e("s_nop 1")
            k.e(f"s_cmp_ge_u32 s62, {target}")
            k.e(f"s_cbranch_scc1 {dn}")

        if early:
            k.e("s_waitcnt vmcnt(0)")
            check(VP)
        k.e(f"{lp}:")
        k.e(f"buffer_load_dword v{VP}, off, s[8:11], s{soff} sc1")
        k.e("s_waitcnt vmcnt(0)")
        check(VP)
        k.e("s_sleep 1")
        k.e(f"s_sub_u32 s{S_TO}, s{S_TO}, 1")
        k.e(f"s_cbranch_scc0 {lp}")
        k.e(f"s_mov_b32 s{S_TO}, 0")
        k.e(f"{dn}:")

    def lds_wait(self, k, addr, target):
        lp, dn = k.label("lw"), k.label("lwd")
        VP = self.VP
        k.e(f"v_mov_b32 v{VP+1}, {addr}")
        k.e(f"{lp}:")
        k.e(f"ds_read_b32 v{VP+2}, v{VP+1}")
        k.e("s_waitcnt lgkmcnt(0)")
        k.e(f"v_readfirstlane_b32 s62, v{VP+2}")
        k.e("s_nop 1")
        k.e(f"s_cmp_ge_u32 s62, {target}")
        k.e(f"s_cbranch_scc1 {dn}")
        k.e("s_sleep 1")
        k.e(f"s_sub_u32 s{S_TO}, s{S_TO}, 1")
        k.e(f"s_cbranch_scc0 {lp}")
        k.e(f"s_mov_b32 s{S_TO}, 0")
        k.e(f"{dn}:")

    def lds_inc(self, k, addr):
        VP = self.VP
        k.e("s_mov_b64 exec, 1")
        k.e(f"v_mov_b32 v{VP+1}, {addr}")
        k.e(f"v_mov_b32 v{VP+2}, 1")
        k.e(f"ds_add_u32 v{VP+1}, v{VP+2}")
        k.e("s_mov_b64 exec, -1")

    def wave0_poll_early(self, soff):
        k = self.C
        sk = k.label("w0")
        k.e(f"s_cmp_lg_u32 s{S_WAVE}, 0")
        k.e(f"s_cbranch_scc1 {sk}")
        k.e(f"buffer_load_dword v{self.VP}, off, s[8:11], s{soff} sc1")
        k.e(f"{sk}:")

    def cnt_off(self, k, dst, base, idx_sgpr, shift=0):
        if shift:
            k.e(f"s_lshr_b32 s{dst}, s{idx_sgpr}, {shift}")
            k.e(f"s_lshl_b32 s{dst}, s{dst}, 8")
        else:
            k.e(f"s_lshl_b32 s{dst}, s{idx_sgpr}, 8")
        k.e(f"s_add_u32 s{dst}, s{dst}, {WS_CNT + base*256}")

    def wave0_poll(self, soff, target, vtmp=None, early=False):
        k = self.C
        sk = k.label("w0")
        k.e(f"s_cmp_lg_u32 s{S_WAVE}, 0")
        k.e(f"s_cbranch_scc1 {sk}")
        self.poll(k, soff, target, early=early)
        k.e(f"{sk}:")

    def signal(self, soff, vtmp, tag=None):
        k = self.C
        sk = k.label("sig")
        if tag is None:
            k.wait_vm_all()
        else:
            k.wait_vm(tag)
        k.e("s_mov_b64 exec, 1")
        k.e(f"v_mov_b32 v{vtmp}, 1")
        k.e(f"v_mov_b32 v{vtmp+1}, {SYNCW}")
        k.e(f"ds_add_rtn_u32 v{vtmp+2}, v{vtmp+1}, v{vtmp}")
        k.wait_lg_all()
        k.e(f"v_readfirstlane_b32 s62, v{vtmp+2}")
        k.e("s_nop 1")
        k.e("s_and_b32 s62, s62, 3")
        k.e("s_cmp_lg_u32 s62, 3")
        k.e(f"s_cbranch_scc1 {sk}")
        k.e(f"buffer_atomic_add v{vtmp}, off, s[8:11], s{soff}")
        k.e(f"{sk}:")
        k.e("s_mov_b64 exec, -1")
        k.e("s_nop 1")

    def region_begin(self):
        labs = {}
        for who, k in (("C", self.C), ("L", self.L)):
            labs[who] = k.label("skip")
            k.e(f"s_cmp_eq_u32 s{S_ACT}, 0")
            k.e(f"s_cbranch_scc1 {labs[who]}")
        return labs

    def region_end(self, labs):
        for who, k in (("C", self.C), ("L", self.L)):
            k.e(f"{labs[who]}:")
            k.e("s_nop 7")
            k.e("s_nop 7")

    THROTTLE = 8

    def throttle(self):
        k = self.L
        if len(k.vm) >= self.THROTTLE:
            k.e(f"s_waitcnt vmcnt({self.THROTTLE - 1})")
            k.vm = k.vm[len(k.vm) - (self.THROTTLE - 1):]

    def dma_row(self, lds_off, sbase, imm, tag, sc="", sextra=None, thr=False):
        k = self.L
        if thr:
            self.throttle()
        k.e(f"s_add_u32 m0, s{S_W1K}, {lds_off}")
        if sextra is not None:
            k.e(f"s_add_u32 s63, s{sbase}, s{sextra}")
            if imm:
                k.e(f"s_add_u32 s63, s63, {imm}")
        else:
            k.e(f"s_add_u32 s63, s{sbase}, {imm}")
        k.vmem(f"buffer_load_dwordx4 v{V_L16}, s[8:11], s63 offen{sc} lds", tag)
        assert len(k.vm) <= 63

    def dma_ext(self, lds_off, sbase256, imm, tag):
        k = self.L
        k.e(f"s_add_u32 m0, s{S_W256}, {lds_off}")
        k.e(f"s_add_u32 s63, s{sbase256}, {imm}")
        k.vmem(f"buffer_load_dword v{V_L4}, s[8:11], s63 offen lds", tag)
        assert len(k.vm) <= 63

    def flush_stamps(self):
        k = self.C
        if Kernel.PROFILE and getattr(k, "stamps", None):
            self.stamp_names = getattr(self, "stamp_names", [])
            self.stamp_names.append(list(k.stamps))
            n = len(k.stamps)
            k.e("s_lshl_b32 s100, s2, 2")
            k.e(f"s_add_u32 s100, s100, s{S_W4}")
            k.e("s_lshl_b32 s100, s100, 7")
            k.e(f"s_add_u32 s100, s100, {WS_DBG + self.nslot*1024*128}")
            for i in range(n):
                k.e(f"v_mov_b32 v244, s{64+2*i}")
                k.e(f"buffer_store_dword v244, off, s[8:11], s100 offset:{4*i}")
                k.e("s_nop 1")
            k.stamps = []
            self.nslot += 1

    def prologue(self):
        k = self.P
        self.L_end = k.label("end")
        self.L_load = k.label("loader")
        k.e("s_cmp_ge_u32 s2, 256")
        k.e(f"s_cbranch_scc1 {self.L_end}")
        k.e(f"s_load_dwordx2 s[4:5], s[0:1], {KA_WS}")
        k.e(f"s_load_dwordx2 s[6:7], s[0:1], {KA_OUT}")
        k.e("v_lshrrev_b32 v3, 6, v0")
        k.e("v_and_b32 v0, 63, v0")
        k.e(f"v_readfirstlane_b32 s{S_WAVE}, v3")
        k.e(f"v_lshlrev_b32 v{V_L16}, 4, v0")
        k.e(f"v_lshlrev_b32 v{V_L4}, 2, v0")
        k.e(f"s_and_b32 s{S_W4}, s{S_WAVE}, 3")
        k.e(f"s_lshl_b32 s{S_W1K}, s{S_W4}, 10")
        k.e(f"s_lshl_b32 s{S_W256}, s{S_W4}, 8")
        k.e(f"s_and_b32 s{S_XCD}, s2, 7")
        k.e(f"s_lshr_b32 s{S_J}, s2, 3")
        t = ST
        k.e(f"s_lshr_b32 s{S_RBQ}, s{S_XCD}, 1")
        k.e(f"s_lshl_b32 s{S_RBQ}, s{S_RBQ}, 2")
        k.e(f"s_lshr_b32 s{t}, s{S_J}, 3")
        k.e(f"s_add_u32 s{S_RBQ}, s{S_RBQ}, s{t}")
        k.e(f"s_and_b32 s{S_H}, s{S_XCD}, 1")
        k.e(f"s_lshl_b32 s{S_H}, s{S_H}, 3")
        k.e(f"s_and_b32 s{t+1}, s{S_J}, 7")
        k.e(f"s_add_u32 s{S_H}, s{S_H}, s{t+1}")
        self._rot(k, t + 1, S_ROTQ)
        k.e(f"s_lshr_b32 s{S_RBG}, s{S_XCD}, 2")
        k.e(f"s_lshl_b32 s{S_RBG}, s{S_RBG}, 3")
        k.e(f"s_lshr_b32 s{t}, s{S_J}, 2")
        k.e(f"s_add_u32 s{S_RBG}, s{S_RBG}, s{t}")
        k.e(f"s_and_b32 s{S_CB}, s{S_XCD}, 3")
        k.e(f"s_lshl_b32 s{S_CB}, s{S_CB}, 2")
        k.e(f"s_and_b32 s{t+1}, s{S_J}, 3")
        k.e(f"s_add_u32 s{S_CB}, s{S_CB}, s{t+1}")
        k.e(f"s_lshl_b32 s{t+1}, s{t+1}, 1")
        self._rot(k, t + 1, S_ROTG)
        k.e(f"s_lshl_b32 s{S_MB}, s{S_XCD}, 2")
        k.e(f"s_and_b32 s{t}, s{S_J}, 3")
        k.e(f"s_add_u32 s{S_MB}, s{S_MB}, s{t}")
        k.e(f"s_lshr_b32 s{S_NB}, s{S_J}, 2")
        k.e(f"s_cmp_lt_u32 s{S_J}, 28")
        k.e(f"s_cselect_b32 s{S_ACT}, 1, 0")
        k.e(f"s_mov_b32 s{S_TO}, 0x100000")
        k.e(f"v_mov_b32 v3, {SYNCW}")
        k.e("v_mov_b32 v4, 0")
        k.e("ds_write_b32 v3, v4")
        k.e("ds_write_b32 v3, v4 offset:4")
        k.e("ds_write_b32 v3, v4 offset:8")
        k.e("s_waitcnt lgkmcnt(0)")
        k.e("s_mov_b32 s8, s4")
        k.e("s_mov_b32 s9, s5")
        k.e(f"s_mov_b32 s10, {WS_BYTES}")
        k.e("s_mov_b32 s11, 0x00020000")
        k.e(f"s_cmp_ge_u32 s{S_WAVE}, 4")
        k.e(f"s_cbranch_scc1 {self.L_load}")

    def _rot(self, k, sr, dst):
        a, b = ST + 2, ST + 3
        k.e(f"s_cmp_ge_u32 s{sr}, 7")
        k.e(f"s_cselect_b32 s{a}, 0, s{sr}")
        k.e(f"s_lshl_b32 s{a}, s{a}, 12")
        for i in range(7):
            if i:
                k.e(f"s_add_u32 s{a}, s{a}, 4096")
                k.e(f"s_cmp_ge_u32 s{a}, 28672")
                k.e(f"s_cselect_b32 s{a}, 0, s{a}")
            k.e(f"s_mov_b32 s{dst+i}, s{a}")

    def l_tiles(self, kind, tiles, slot_off, thr=True):
        rot = S_ROTQ if kind == "qkv" else S_ROTG
        for t in tiles:
            for g in range(7):
                self.dma_row(slot_off[t] + g * 4096, ST, t * TILE, ("w", t), sextra=rot + g, thr=thr)
            self.dma_ext(slot_off[t] + 28 * 1024, ST + 1, t * TILE + 28 * 1024, ("w", t))

    def l_wbase(self, kind):
        k = self.L
        if kind == "qkv":
            k.e(f"s_mul_i32 s{ST}, s{S_H}, {3*TILE}")
            k.e(f"s_add_u32 s{ST}, s{ST}, {WS_WQKV}")
        else:
            k.e(f"s_mul_i32 s{ST}, s{S_CB}, {7*TILE}")
            k.e(f"s_add_u32 s{ST}, s{ST}, {WS_WGU}")
        k.e(f"s_add_u32 s{ST+1}, s{ST}, s{S_W256}")
        k.e(f"s_add_u32 s{ST}, s{ST}, s{S_W1K}")

    VX, VXE, VRING, RING, VACC, VT = 16, 128, 132, 8, 164, 228
    V_S1, V_S2, V_ONE, V_RSTD, V_K1, V_K3, V_Q, V_LB = 3, 4, 5, 6, 7, 8, 9, 10
    VQ = 244

    def c_lngemm(self, kind, layer, xoff, stoff, phases, slot_off, on_step, NACC, PRE=3, on_tiles_done=None):
        k = self.C
        VX, VXE, VRING, RING, VACC, VT = self.VX, self.VXE, self.VRING, self.RING, self.VACC, self.VT
        V_S1, V_S2, V_ONE, V_RSTD, V_K1, V_K3, V_Q, V_LB = (self.V_S1, self.V_S2, self.V_ONE, self.V_RSTD,
                                                            self.V_K1, self.V_K3, self.V_Q, self.V_LB)
        rot = S_ROTQ if kind == "qkv" else S_ROTG
        srb = S_RBQ if kind == "qkv" else S_RBG
        s_rb32, s_x, s_st, s_xg, s_out, s_tmp = ST, ST + 1, ST + 2, ST + 3, ST + 4, ST + 5
        VST = VACC
        for i in range(7):
            k.vmem(f"buffer_load_dwordx2 v[{VST+2*i}:{VST+2*i+1}], v{VT}, s[8:11], s{s_st} offen offset:{i*256}{SCL}", "stat")

        def xload(ks):
            r = VX + ks * 4
            if ks % 4 == 0:
                k.e(f"s_add_u32 s{s_xg}, s{s_x}, s{rot+ks//4}")
            k.vmem(f"buffer_load_dwordx4 v[{r}:{r+3}], v{V_L16}, s[8:11], s{s_xg} offen offset:{(ks%4)*1024}{SCL}", ("x", ks))

        xq = list(range(28))
        for _ in range(4 * PRE):
            xload(xq.pop(0))
        k.stamp("xissued")
        T = VT
        k.wait_vm("stat")
        k.e(f"v_add_f32 v{V_S1}, v{VST}, v{VST+2}")
        k.e(f"v_add_f32 v{V_S2}, v{VST+1}, v{VST+3}")
        for i in range(2, 7):
            k.e(f"v_add_f32 v{V_S1}, v{V_S1}, v{VST+2*i}")
            k.e(f"v_add_f32 v{V_S2}, v{V_S2}, v{VST+2*i+1}")
        k.e(f"v_mov_b32 v{T}, v{V_S1}")
        k.e(f"v_mov_b32 v{T+1}, v{V_S2}")
        k.e(f"v_permlane32_swap_b32 v{T}, v{V_S1}")
        k.e(f"v_permlane32_swap_b32 v{T+1}, v{V_S2}")
        k.e(f"v_add_f32 v{V_S1}, v{T}, v{V_S1}")
        k.e(f"v_add_f32 v{V_S2}, v{T+1}, v{V_S2}")
        k.e(f"v_mul_f32 v{V_S1}, {f2u(-1.0/D)}, v{V_S1}")
        k.e(f"v_mul_f32 v{V_S2}, {f2u(1.0/D)}, v{V_S2}")
        k.e(f"v_fma_f32 v{V_S2}, -v{V_S1}, v{V_S1}, v{V_S2}")
        k.e(f"v_max_f32 v{V_S2}, 0, v{V_S2}")
        k.e(f"v_add_f32 v{V_Q}, {f2u(1e-5)}, v{V_S2}")
        k.e(f"v_cvt_pk_bf16_f32 v{VXE}, v{V_S1}, v{V_S1}")
        k.e(f"v_rsq_f32 v{V_RSTD}, v{V_Q}")
        k.e(f"v_lshlrev_b32 v{T}, 16, v{VXE}")
        k.e(f"v_sub_f32 v{T}, v{V_S1}, v{T}")
        k.e(f"v_cvt_pk_bf16_f32 v{VXE+1}, v{T}, v{T}")
        k.e(f"v_mov_b32 v{VXE+2}, v{VXE}")
        k.e(f"v_mov_b32 v{VXE+3}, v{VXE+1}")
        if kind == "gu":
            k.e(f"v_mul_f32 v{V_K1}, {f2u(C1)}, v{V_RSTD}")
            k.e(f"v_mul_f32 v{T}, v{V_RSTD}, v{V_RSTD}")
            k.e(f"v_mul_f32 v{T}, v{T}, v{V_RSTD}")
            k.e(f"v_mul_f32 v{V_K3}, {f2u(C3)}, v{T}")
        else:
            k.e(f"v_mul_f32 v{V_K1}, {f2u(QSCALE)}, v{V_RSTD}")
            RR = VACC + 48
            k.e(f"s_lshl_b32 s{s_tmp}, s{S_W4}, 7")
            k.e(f"s_add_u32 s{s_tmp}, s{s_tmp}, {SCR}")
            k.e(f"v_and_b32 v{T}, 31, v0")
            k.e(f"v_lshlrev_b32 v{T}, 2, v{T}")
            k.e(f"v_add_u32 v{T}, s{s_tmp}, v{T}")
            k.lds(f"ds_write_b32 v{T}, v{V_RSTD}", "w")
            k.e(f"v_lshrrev_b32 v{T+1}, 5, v0")
            k.e(f"v_lshlrev_b32 v{T+1}, 4, v{T+1}")
            k.e(f"v_add_u32 v{T+1}, s{s_tmp}, v{T+1}")
            k.wait_lg_all()
            for q in range(4):
                k.lds(f"ds_read_b128 v[{RR+4*q}:{RR+4*q+3}], v{T+1} offset:{q*32}", "r")
            k.wait_lg_all()

        steps = []
        for pi, ph in enumerate(phases):
            for ks in range(29):
                for ti, t in enumerate(ph):
                    steps.append((t, ks, pi, ti))
        N = len(steps)
        fill = []
        order = [t for ph in phases for t in ph]

        def acc_of(t):
            return VACC + (order.index(t) % NACC) * 16

        def lds_addr(t, ks):
            off = slot_off[t] + ks * 1024
            b = off // 59392
            return V_LB + b, off - b * 59392

        def epilogue_gu(t):
            a0 = acc_of(t)
            T = VT
            L = []
            for half in range(2):
                idx = range(half * 4, half * 4 + 4)
                for i in idx:
                    L.append(f"v_mul_f32 v{T+i}, v{a0+i}, v{a0+i}")
                for i in idx:
                    L.append(f"v_fma_f32 v{T+i}, v{T+i}, v{V_K3}, v{V_K1}")
                for i in idx:
                    L.append(f"v_mul_f32 v{T+i}, v{a0+i}, v{T+i}")
                for i in idx:
                    L.append(f"v_exp_f32 v{T+i}, v{T+i}")
                    L.append(f"v_mul_f32 v{a0+i}, v{a0+i}, v{a0+8+i}")
                for i in idx:
                    L.append(f"v_fma_f32 v{T+i}, v{T+i}, v{V_Q}, v{V_Q}")
                for i in idx:
                    L.append(f"v_rcp_f32 v{T+i}, v{T+i}")
                for i in idx:
                    L.append(f"v_mul_f32 v{a0+i}, v{a0+i}, v{T+i}")
            O = VT + 8 + (t % 2) * 4
            for j in range(4):
                L.append(f"v_cvt_pk_bf16_f32 v{O+j}, v{a0+2*j}, v{a0+2*j+1}")
            L.append(("vmem", f"buffer_store_dwordx4 v[{O}:{O+3}], v{V_L16}, s[8:11], s{s_out + t//4} offen offset:{(t%4)*1024}{SC}", ("st", t)))
            return L

        def cost(f):
            if isinstance(f, tuple) or callable(f):
                return 1.0
            return 2.0 if (f.startswith("v_exp") or f.startswith("v_rcp")) else 1.0

        def emit_fill(b):
            while fill and b > 0:
                f = fill.pop(0)
                b -= cost(f)
                if isinstance(f, tuple):
                    if f[0] == "vmem":
                        k.vmem(f[1], f[2])
                    else:
                        k.lds(f[1], f[2])
                elif callable(f):
                    f()
                else:
                    k.e(f)

        PF = 6
        done = []
        budget = 3.0
        for i in range(N + PF):
            if i < N:
                t, ks, pi, ti = steps[i]
                on_step(i, steps[i], PF)
                base, off = lds_addr(t, ks)
                r = VRING + (i % RING) * 4
                k.lds(f"ds_read_b128 v[{r}:{r+3}], v{base} offset:{off}", i)
            j = i - PF
            if j >= 0:
                t, ks, pi, ti = steps[j]
                if pi == 0 and ti == 0 and ks < 28 and ks % 4 == 0:
                    while ("x", ks + 3) not in k.issued_tags_phase():
                        xload(xq.pop(0))
                    k.wait_vm(("x", ks + 3))
                    if ks in (0, 12):
                        k.stamp(f"x{ks}")
                if j % 2 == 0:
                    k.wait_lg(min(j + 1, N - 1))
                r = VRING + (j % RING) * 4
                xr = VX + ks * 4 if ks < 28 else VXE
                a = acc_of(t)
                c = "0" if ks == 0 else f"v[{a}:{a+15}]"
                if kind == "qkv" and t == 2:
                    k.e(f"v_mfma_f32_32x32x16_bf16 v[{a}:{a+15}], v[{xr}:{xr+3}], v[{r}:{r+3}], {c}")
                else:
                    k.e(f"v_mfma_f32_32x32x16_bf16 v[{a}:{a+15}], v[{r}:{r+3}], v[{xr}:{xr+3}], {c}")
                if ks == 28:
                    done.append(t)
                if kind == "qkv" and ks == 1 and pi >= 1:
                    fill.extend(on_tiles_done(done, acc_of))
                    done = []
                    budget = 8.0
                if kind == "gu" and ks == 1 and pi >= 1:
                    for td in done:
                        fill.extend(epilogue_gu(td))
                        if td == 4:
                            fill.append(on_tiles_done)
                    done = []
                    remaining = N - j
                    tot = sum(cost(f) for f in fill) + 85.0 * (len(phases) - 1 - pi)
                    budget = max(tot / max(remaining - 2, 1), 85.0 / 26.0)
                if xq:
                    xload(xq.pop(0))
                emit_fill(budget)
        self._lng = dict(fill=fill, done=done, emit_fill=emit_fill, epilogue_gu=epilogue_gu, acc_of=acc_of)

    def c_lngemm_setup(self, kind, xoff, stoff):
        k = self.C
        VT, V_LB, V_ONE = self.VT, self.V_LB, self.V_ONE
        srb = S_RBQ if kind == "qkv" else S_RBG
        s_rb32, s_x, s_st = ST, ST + 1, ST + 2
        k.e(f"s_lshl_b32 s{s_rb32}, s{srb}, 2")
        k.e(f"s_add_u32 s{s_rb32}, s{s_rb32}, s{S_W4}")
        k.e(f"s_mul_i32 s{s_x}, s{s_rb32}, 28672")
        k.e(f"s_add_u32 s{s_x}, s{s_x}, {xoff}")
        k.e(f"s_mul_i32 s{s_st}, s{s_rb32}, 3584")
        k.e(f"s_add_u32 s{s_st}, s{s_st}, {stoff}")
        k.e(f"v_mov_b32 v{V_ONE}, 0x3f803f80")
        k.e(f"v_lshrrev_b32 v{VT}, 5, v0")
        k.e(f"v_mul_u32_u24 v{VT}, 1792, v{VT}")
        k.e(f"v_and_b32 v{VT+1}, 31, v0")
        k.e(f"v_lshl_add_u32 v{VT}, v{VT+1}, 3, v{VT}")
        k.e(f"v_mov_b32 v{V_LB}, v{V_L16}")
        k.e(f"v_add_u32 v{V_LB+1}, 59392, v{V_L16}")
        k.e(f"v_add_u32 v{V_LB+2}, {2*59392}, v{V_L16}")
        k.phase_mark()

    def phase_qkv(self, layer, xoff, stoff):
        C, L = self.C, self.L
        slot_off = [0, TILE, 2 * TILE]
        self.l_wbase("qkv")
        self.l_tiles("qkv", [1, 2, 0], slot_off, thr=layer > 0)
        L.wait_vm_all()
        self.bar("L", "q1")
        k = C
        k.stamp("real_q", real=True)
        k.stamp("t0")
        self.c_lngemm_setup("qkv", xoff, stoff)
        VT, VQ = self.VT, self.VQ
        RR = self.VACC + 48
        s_rb32, s_kv, s_cnt = ST, ST + 6, ST + 8
        k.e(f"s_lshl_b32 s{s_kv}, s{S_H}, 6")
        k.e(f"s_add_u32 s{s_kv}, s{s_kv}, s{s_rb32}")
        k.e(f"s_lshl_b32 s{s_kv}, s{s_kv}, 12")
        k.e(f"s_add_u32 s{s_kv}, s{s_kv}, {WS_KV[layer]}")
        k.e(f"s_lshl_b32 s{ST+7}, s{S_W4}, 12")
        k.e(f"s_add_u32 s{ST+7}, s{ST+7}, {KVWIN}")
        VKV = 13
        k.e(f"v_add_u32 v{VKV}, s{ST+7}, v{V_L16}")
        k.e(f"v_and_b32 v{VT+1}, 31, v0")
        k.e(f"v_cmp_eq_u32 vcc, 28, v{VT+1}")
        k.e(f"s_lshl_b32 s{s_cnt}, s{S_RBQ}, 4")
        k.e(f"s_add_u32 s{s_cnt}, s{s_cnt}, s{S_H}")
        self.cnt_off(k, s_cnt, CNT_Q[layer], s_cnt)
        if layer > 0:
            self.cnt_off(C, ST + 7, CNT_D[layer - 1], S_RBQ)
            self.wave0_poll(ST + 7, 14)
        self.bar("C", "q1")
        k.stamp("q1")

        def epi(t, acc_of):
            a = acc_of(t)
            L_ = []
            for r in range(16):
                sc = self.V_K1 if t == 0 else (self.V_RSTD if t == 1 else RR + r)
                L_.append(f"v_mul_f32 v{a+r}, v{a+r}, v{sc}")
            dst = VQ if t == 0 else a
            for j in range(8):
                L_.append(f"v_cvt_pk_bf16_f32 v{dst+j}, v{a+2*j}, v{a+2*j+1}")
            if t == 2:
                for j in range(8):
                    L_.append(f"v_cndmask_b32 v{a+j}, v{a+j}, v{self.V_ONE}, vcc")
            if t:
                for u in range(2):
                    o = (t - 1) * 2048 + u * 1024
                    L_.append(("vmem", f"buffer_store_dwordx4 v[{a+4*u}:{a+4*u+3}], v{V_L16}, s[8:11], s{s_kv} offen offset:{o}{SC}", "st"))
            return L_

        def kv_done(done, acc_of):
            L_ = []
            for t in done:
                L_ += epi(t, acc_of)
            for t in done:
                a = acc_of(t)
                for u in range(2):
                    o = (t - 1) * 2048 + u * 1024
                    L_.append(("lds", f"ds_write_b128 v{VKV}, v[{a+4*u}:{a+4*u+3}] offset:{8*4096+o}", "w"))
            return L_

        def on_step(i, st, pf):
            t, ks, pi, ti = st
            if pi == 1 and ks == 28:
                k.stamp("kvsig")
                self.signal(s_cnt, VT)
                self.lds_inc(k, SYNCW + 4)
                k.lg.append("inc")

        self.c_lngemm("qkv", layer, xoff, stoff, [[1, 2], [0]], slot_off, on_step, 3, on_tiles_done=kv_done)
        k.stamp("mfma")
        g = self._lng
        g["fill"].extend(epi(0, g["acc_of"]))
        g["emit_fill"](1e9)
        k.wait_lg_all()
        k.stamp("q2")

    def phase_attn(self, layer):
        C, L = self.C, self.L
        k = L
        k.e(f"s_lshl_b32 s{ST}, s{S_H}, 6")
        k.e(f"s_lshl_b32 s{ST+1}, s{S_RBQ}, 2")
        k.e(f"s_add_u32 s{ST}, s{ST}, s{ST+1}")
        k.e(f"s_lshl_b32 s{ST}, s{ST}, 12")
        k.e(f"s_add_u32 s{ST}, s{ST}, {WS_KV[layer] - 8*4096}")
        k.e(f"s_add_u32 s{ST}, s{ST}, s{S_W1K}")
        for d in (1, 2):
            k.e(f"s_cmp_lt_u32 s{S_RBQ}, {d}")
            k.e(f"s_cselect_b32 s{ST+d}, {WS_BYTES}, s{ST}")
        l_other, l_go = k.label("lo"), k.label("lgo")
        k.e(f"s_cmp_lg_u32 s{S_W4}, 0")
        k.e(f"s_cbranch_scc1 {l_other}")
        self.lds_wait(k, SYNCW + 4, 4 * (layer + 1))
        for d in (1, 2):
            sk = k.label("nonb")
            k.e(f"s_cmp_lt_u32 s{S_RBQ}, {d}")
            k.e(f"s_cbranch_scc1 {sk}")
            k.e(f"s_sub_u32 s{ST+3}, s{S_RBQ}, {d}")
            k.e(f"s_lshl_b32 s{ST+3}, s{ST+3}, 4")
            k.e(f"s_add_u32 s{ST+3}, s{ST+3}, s{S_H}")
            self.cnt_off(k, ST + 3, CNT_Q[layer], ST + 3)
            self.poll(k, ST + 3, 1)
            k.e(f"{sk}:")
        self.lds_inc(k, SYNCW + 8)
        k.e(f"s_branch {l_go}")
        k.e(f"{l_other}:")
        self.lds_wait(k, SYNCW + 8, layer + 1)
        k.e(f"{l_go}:")
        for d in (1, 2):
            for b in range(8 - 4 * d, 8 - 4 * d + 4):
                self.dma_row(KVWIN + b * 4096, ST + d, b * 4096, "kv", sc=SCL)
        k.wait_vm_all()
        self.bar("L", "a1")
        k.e(f"s_lshl_b32 s{ST}, s{S_NB}, 16")
        k.e(f"s_add_u32 s{ST}, s{ST}, {WS_WO}")
        k.e(f"s_add_u32 s{ST}, s{ST}, s{S_W1K}")
        for r in range(16):
            self.dma_row(r * 4096, ST, r * 4096, "wo")
        k.wait_vm_all()
        self.bar("L", "a2")
        k = C
        VS, VO, VR, VT, VQ, VKV = 16, 160, 176, 208, self.VQ, 13
        NR = 8
        k.e(f"v_and_b32 v{VT}, 31, v0")
        k.e(f"v_lshrrev_b32 v{VT+1}, 5, v0")
        k.e(f"v_lshlrev_b32 v{VT+1}, 2, v{VT+1}")
        k.e(f"v_sub_u32 v{VT}, v{VT}, v{VT+1}")
        k.e(f"v_mov_b32 v{VT+2}, {NEG}")
        s_qb, s_o = ST, ST + 1
        k.e(f"s_lshl_b32 s{s_qb}, s{S_RBQ}, 2")
        k.e(f"s_add_u32 s{s_qb}, s{s_qb}, s{S_W4}")
        k.e(f"s_lshl_b32 s{s_o}, s{s_qb}, 5")
        k.e(f"s_lshl_b32 s{ST+2}, s{S_H}, 1")
        k.e(f"s_add_u32 s{s_o}, s{s_o}, s{ST+2}")
        k.e(f"s_lshl_b32 s{s_o}, s{s_o}, 10")
        k.e(f"s_add_u32 s{s_o}, s{s_o}, {WS_OL[layer]}")
        M0, M1 = VT + 3, VT + 4
        nread = [0]

        def rd(off):
            r = VR + (nread[0] % NR) * 4
            k.lds(f"ds_read_b128 v[{r}:{r+3}], v{VKV} offset:{off}", ("r", nread[0]))
            nread[0] += 1
            return r, ("r", nread[0] - 1)

        def mask_block(i):
            s = VS + i * 16
            for r4 in range(0, 16, 4):
                for r in range(r4, r4 + 4):
                    c = 8 * (r >> 2) + (r & 3)
                    k.e(f"v_cmp_ge_i32 s[{ST+4+2*(r-r4)}:{ST+5+2*(r-r4)}], v{VT}, {c}")
                for r in range(r4, r4 + 4):
                    m = f"s[{ST+4+2*(r-r4)}:{ST+5+2*(r-r4)}]"
                    if i == 8:
                        k.e(f"v_cndmask_b32 v{s+r}, v{VT+2}, v{s+r}, {m}")
                    else:
                        k.e(f"v_cndmask_b32 v{s+r}, v{s+r}, v{VT+2}, {m}")

        def s_block(i, frs):
            s = VS + i * 16
            for u in range(2):
                r, tag = frs[u]
                k.wait_lg(tag)
                c = "0" if u == 0 else f"v[{s}:{s+15}]"
                k.e(f"v_mfma_f32_32x32x16_bf16 v[{s}:{s+15}], v[{r}:{r+3}], v[{VQ+4*u}:{VQ+4*u+3}], {c}")

        def max_block(i, first=False):
            s = VS + i * 16
            L_ = []
            if first:
                L_.append(f"v_max3_f32 v{M0}, v{s}, v{s+1}, v{s+2}")
                L_.append(f"v_max3_f32 v{M1}, v{s+3}, v{s+4}, v{s+5}")
                idx = 6
            else:
                idx = 0
            tog = 0
            while idx < 16:
                m = (M0, M1)[tog]
                L_.append(f"v_max3_f32 v{m}, v{m}, v{s+idx}, v{s+idx+1}")
                idx += 2
                tog ^= 1
            return L_

        fr = [rd(8 * 4096), rd(8 * 4096 + 1024)]
        s_block(8, fr)
        mask_block(8)
        for x in max_block(8, first=True):
            k.e(x)
        self.bar("C", "a1")
        k.stamp("a1")
        order = [7, 6, 5, 4, 3, 2, 1, 0]
        frs = {}
        for i in order[:3]:
            frs[i] = [rd(i * 4096), rd(i * 4096 + 1024)]
        for n, i in enumerate(order):
            s_block(i, frs[i])
            if n + 3 < 8:
                i2 = order[n + 3]
                frs[i2] = [rd(i2 * 4096), rd(i2 * 4096 + 1024)]
        pv_order = [8, 7, 6, 5, 4, 3, 2, 1, 0]
        vfr = {}
        for i in pv_order[:2]:
            vfr[i] = [rd(i * 4096 + 2048), rd(i * 4096 + 3072)]
        mask_block(0)
        L_ok = k.label("ok")
        k.e(f"s_cmp_ge_u32 s{s_qb}, 8")
        k.e(f"s_cbranch_scc1 {L_ok}")
        for i in range(8):
            L_skip = k.label("skip")
            k.e(f"s_cmp_ge_u32 s{s_qb}, {8-i}")
            k.e(f"s_cbranch_scc1 {L_skip}")
            for r in range(16):
                k.e(f"v_mov_b32 v{VS+i*16+r}, v{VT+2}")
            k.e(f"{L_skip}:")
        k.e(f"{L_ok}:")
        for i in order:
            for x in max_block(i):
                k.e(x)
        k.e(f"v_max_f32 v{M0}, v{M0}, v{M1}")
        k.e(f"v_mov_b32 v{M1}, v{M0}")
        k.e(f"v_permlane32_swap_b32 v{M1}, v{M0}")
        k.e(f"v_max_f32 v{M0}, v{M0}, v{M1}")
        k.stamp("max")
        pend = []
        for n, i in enumerate(pv_order):
            s = VS + i * 16
            for r in range(16):
                k.e(f"v_sub_f32 v{s+r}, v{s+r}, v{M0}")
                if r == 3 and pend:
                    pend.pop(0)()
            for r in range(16):
                k.e(f"v_exp_f32 v{s+r}, v{s+r}")
                if r == 3 and pend:
                    pend.pop(0)()
            if n + 2 < 9:
                i2 = pv_order[n + 2]
                vfr[i2] = [rd(i2 * 4096 + 2048), rd(i2 * 4096 + 3072)]
            for j in range(8):
                k.e(f"v_cvt_pk_bf16_f32 v{s+j}, v{s+2*j}, v{s+2*j+1}")
            for u in range(2):
                r, tag = vfr[i][u]
                c = "0" if (n == 0 and u == 0) else f"v[{VO}:{VO+15}]"

                def f(r=r, tag=tag, c=c, s=s, u=u):
                    k.wait_lg(tag)
                    k.e(f"v_mfma_f32_32x32x16_bf16 v[{VO}:{VO+15}], v[{r}:{r+3}], v[{s+4*u}:{s+4*u+3}], {c}")
                pend.append(f)
        while pend:
            pend.pop(0)()
        self.bar("C", "a2")
        k.stamp("pv")
        k.e(f"v_mov_b32 v{VT}, v{VO+12}")
        k.e(f"v_mov_b32 v{VT+1}, v{VO+12}")
        k.e(f"v_permlane32_swap_b32 v{VT}, v{VT+1}")
        k.e(f"v_rcp_f32 v{VT+1}, v{VT+1}")
        for r in range(16):
            k.e(f"v_mul_f32 v{VO+r}, v{VO+r}, v{VT+1}")
        for j in range(8):
            k.e(f"v_cvt_pk_bf16_f32 v{VO+j}, v{VO+2*j}, v{VO+2*j+1}")
        k.vmem(f"buffer_store_dwordx4 v[{VO}:{VO+3}], v{V_L16}, s[8:11], s{s_o} offen{SC}", "st")
        k.vmem(f"buffer_store_dwordx4 v[{VO+4}:{VO+7}], v{V_L16}, s[8:11], s{s_o} offen offset:1024{SC}", "st")
        self.cnt_off(k, ST + 2, CNT_A[layer], S_RBQ)
        self.signal(ST + 2, VT)
        k.stamp("a2")
        self.flush_stamps()

    def phase_tile(self, kind, layer, aoff, woff, nks, resoff, outoff, stoff, cnt_dep, dep_target, cnt_out, final=False):
        C, L = self.C, self.L
        SK = 4
        NS = nks // SK
        if kind == "wo":
            NWS, NAS = NS, NS
            w_lds = lambda s, ni: ni * 32768 + s * 4096
            a_lds = lambda s, mi: 65536 + mi * 32768 + s * 4096
        else:
            NWS, NAS = 12, 7
            w_lds = lambda s, ni: DOWN_WBASE + DOWN_PERM[s % NWS] * 8192 + ni * 4096
            a_lds = lambda s, mi: ((s % NAS) * 2 + mi) * 4096
        p = kind[0]
        labs = self.region_begin()
        k = L
        for i in range(2):
            k.e(f"s_lshl_b32 s{ST+i}, s{S_NB}, 1")
            k.e(f"s_add_u32 s{ST+i}, s{ST+i}, {i}")
            k.e(f"s_mul_i32 s{ST+i}, s{ST+i}, {nks*1024}")
            k.e(f"s_add_u32 s{ST+i}, s{ST+i}, {woff}")
            k.e(f"s_add_u32 s{ST+i}, s{ST+i}, s{S_W1K}")
            k.e(f"s_lshl_b32 s{ST+2+i}, s{S_MB}, 1")
            k.e(f"s_add_u32 s{ST+2+i}, s{ST+2+i}, {i}")
            k.e(f"s_mul_i32 s{ST+2+i}, s{ST+2+i}, {nks*1024}")
            k.e(f"s_add_u32 s{ST+2+i}, s{ST+2+i}, {aoff}")
            k.e(f"s_add_u32 s{ST+2+i}, s{ST+2+i}, s{S_W1K}")

        def w_stage(s):
            for ni in range(2):
                self.dma_row(w_lds(s, ni), ST + ni, s * 4096, ("w", s))

        def a_stage(s):
            for mi in range(2):
                self.dma_row(a_lds(s, mi), ST + 2 + mi, s * 4096, ("a", s), sc=SCL)

        na = 0
        nw = NWS
        self.bar("L", p + "dep")
        while na < min(NAS, NS):
            a_stage(na)
            na += 1
        for s in range(NS):
            k.wait_vm(("w", s))
            k.wait_vm(("a", s))
            self.bar("L", f"{p}{s}")
            if s >= 2:
                if na < NS and na - NAS <= s - 2:
                    a_stage(na)
                    na += 1
                if nw < NS and nw - NWS <= s - 2:
                    w_stage(nw)
                    nw += 1
        assert na == NS and nw == NS
        self.bar("L", p + "free")
        k = C
        VACC, VRES, VT, VR, NR = 16, 32, 40, 48, 12
        VA, VW = 3, 4
        s_rb32, s_nt, s_xo = ST, ST + 1, ST + 2
        k.stamp("real_" + p, real=True)
        k.stamp("t0")
        k.e(f"s_lshr_b32 s{ST+3}, s{S_W4}, 1")
        k.e(f"s_and_b32 s{ST+4}, s{S_W4}, 1")
        k.e(f"s_lshl_b32 s{s_rb32}, s{S_MB}, 1")
        k.e(f"s_add_u32 s{s_rb32}, s{s_rb32}, s{ST+3}")
        k.e(f"s_lshl_b32 s{s_nt}, s{S_NB}, 1")
        k.e(f"s_add_u32 s{s_nt}, s{s_nt}, s{ST+4}")
        k.e(f"s_mul_i32 s{s_xo}, s{s_rb32}, 28")
        k.e(f"s_lshl_b32 s{ST+5}, s{s_nt}, 1")
        k.e(f"s_add_u32 s{s_xo}, s{s_xo}, s{ST+5}")
        k.e(f"s_lshl_b32 s{s_xo}, s{s_xo}, 10")
        k.e(f"s_add_u32 s{ST+5}, s{s_xo}, {resoff}")
        for u in range(2):
            k.vmem(f"buffer_load_dwordx4 v[{VRES+4*u}:{VRES+4*u+3}], v{V_L16}, s[8:11], s{ST+5} offen offset:{u*1024}{SCL}", "res")
        dmi = a_lds(0, 1) - a_lds(0, 0)
        dni = w_lds(0, 1) - w_lds(0, 0)
        k.e(f"s_mul_i32 s{ST+3}, s{ST+3}, {dmi}")
        k.e(f"s_mul_i32 s{ST+4}, s{ST+4}, {dni}")
        SPAN = 61440
        for b in range(3):
            k.e(f"v_add_u32 v{3+b}, s{ST+3}, v{V_L16}")
            k.e(f"v_add_u32 v{6+b}, s{ST+4}, v{V_L16}")
            if b:
                k.e(f"v_add_u32 v{3+b}, {b*SPAN}, v{3+b}")
                k.e(f"v_add_u32 v{6+b}, {b*SPAN}, v{6+b}")
        self.cnt_off(k, ST + 6, cnt_dep, S_MB, shift=1)
        self.wave0_poll(ST + 6, dep_target)
        if kind == "down":
            self.cnt_off(k, ST + 6, CNT_G2[layer], S_MB, shift=1)
        k.wait_vm("res")
        for j in range(8):
            k.e(f"v_lshlrev_b32 v{VACC+2*j}, 16, v{VRES+j}")
            k.e(f"v_and_b32 v{VACC+2*j+1}, 0xffff0000, v{VRES+j}")
        k.e(f"v_mov_b32 v{VRES}, 0x3f803f80")
        self.bar("C", p + "dep")
        k.stamp("dep")
        PFS = 4
        N = nks

        def rd(base0, off, slot, tag):
            b = off // SPAN
            r = VR + slot * 4
            k.lds(f"ds_read_b128 v[{r}:{r+3}], v{base0+b} offset:{off-b*SPAN}", tag)

        for i in range(N + PFS):
            if i < N:
                s, kk = divmod(i, SK)
                if kk == 0:
                    if kind == "down" and s == 16 - NAS + 2 - 3:
                        self.wave0_poll_early(ST + 6)
                    if kind == "down" and s == 16 - NAS + 2:
                        self.wave0_poll(ST + 6, 16, early=True)
                        k.stamp("depB")
                    self.bar("C", f"{p}{s}")
                    if s in (0, NS // 2, NS - 1):
                        k.stamp(f"s{s}")
                sl = (i % (NR // 2)) * 2
                rd(3, a_lds(s, 0) + kk * 1024, sl, ("a", i))
                rd(6, w_lds(s, 0) + kk * 1024, sl + 1, ("w", i))
            j = i - PFS
            if j >= 0:
                k.wait_lg(("w", j))
                sl = (j % (NR // 2)) * 2
                ra, rw = VR + sl * 4, VR + (sl + 1) * 4
                k.e(f"v_mfma_f32_32x32x16_bf16 v[{VACC}:{VACC+15}], v[{rw}:{rw+3}], v[{ra}:{ra+3}], v[{VACC}:{VACC+15}]")
        self.bar("C", p + "free")
        k.stamp("mfma")
        PK = VR
        for j in range(8):
            k.e(f"v_cvt_pk_bf16_f32 v{PK+j}, v{VACC+2*j}, v{VACC+2*j+1}")
        if not final:
            k.e(f"s_add_u32 s{ST+5}, s{s_xo}, {outoff}")
            k.vmem(f"buffer_store_dwordx4 v[{PK}:{PK+3}], v{V_L16}, s[8:11], s{ST+5} offen{SC}", "st")
            k.vmem(f"buffer_store_dwordx4 v[{PK+4}:{PK+7}], v{V_L16}, s[8:11], s{ST+5} offen offset:1024{SC}", "st")
            k.e(f"v_mov_b32 v{VT}, 0")
            k.e(f"v_mov_b32 v{VT+1}, 0")
            for r in range(8):
                k.e(f"v_dot2c_f32_bf16 v{VT}, v{PK+r}, v{VRES}")
                k.e(f"v_dot2c_f32_bf16 v{VT+1}, v{PK+r}, v{PK+r}")
            k.e(f"v_mov_b32 v{VT+2}, v{VT}")
            k.e(f"v_mov_b32 v{VT+3}, v{VT+1}")
            k.e(f"v_permlane32_swap_b32 v{VT+2}, v{VT}")
            k.e(f"v_permlane32_swap_b32 v{VT+3}, v{VT+1}")
            k.e(f"v_add_f32 v{VT}, v{VT}, v{VT+2}")
            k.e(f"v_add_f32 v{VT+1}, v{VT+1}, v{VT+3}")
            k.e(f"v_and_b32 v{VT+2}, 31, v0")
            k.e(f"v_lshlrev_b32 v{VT+2}, 3, v{VT+2}")
            k.e(f"s_mul_i32 s{ST+5}, s{s_rb32}, 14")
            k.e(f"s_add_u32 s{ST+5}, s{ST+5}, s{s_nt}")
            k.e(f"s_lshl_b32 s{ST+5}, s{ST+5}, 8")
            k.e(f"s_add_u32 s{ST+5}, s{ST+5}, {stoff}")
            k.vmem(f"buffer_store_dwordx2 v[{VT}:{VT+1}], v{VT+2}, s[8:11], s{ST+5} offen{SC}", "st")
            self.cnt_off(k, ST + 6, cnt_out, S_MB, shift=1)
            k.stamp("epi")
            self.signal(ST + 6, VT + 4)
        else:
            k.e(f"s_mov_b32 s{ST+8}, s6")
            k.e(f"s_mov_b32 s{ST+9}, s7")
            k.e(f"s_mov_b32 s{ST+10}, {S*D*2}")
            k.e(f"s_mov_b32 s{ST+11}, 0x00020000")
            k.e(f"v_and_b32 v{VT}, 31, v0")
            k.e(f"v_mul_u32_u24 v{VT}, 896, v{VT}")
            k.e(f"v_lshrrev_b32 v{VT+1}, 5, v0")
            k.e(f"v_lshl_add_u32 v{VT}, v{VT+1}, 4, v{VT}")
            k.e(f"s_mul_i32 s{ST+5}, s{s_rb32}, 28672")
            k.e(f"s_lshl_b32 s{ST+6}, s{s_nt}, 6")
            k.e(f"s_add_u32 s{ST+5}, s{ST+5}, s{ST+6}")
            for q in range(2):
                b = PK + 4 * q
                k.e(f"v_permlane32_swap_b32 v{b}, v{b+2}")
                k.e(f"v_permlane32_swap_b32 v{b+1}, v{b+3}")
                k.vmem(f"buffer_store_dwordx4 v[{b}:{b+3}], v{VT}, s[{ST+8}:{ST+11}], s{ST+5} offen offset:{q*32}", "st")
            k.stamp("epi")
            k.wait_vm_all()
        k.stamp("end")
        self.flush_stamps()
        self.region_end(labs)

    def phase_gu(self, layer, xoff, stoff):
        C, L = self.C, self.L
        phases = [[0, 1, 2], [3], [4], [5], [6]]
        slot_off = [0, TILE, 2 * TILE, 3 * TILE, 4 * TILE, 0, TILE]
        self.l_wbase("gu")
        self.l_tiles("gu", [0, 1, 2, 3, 4], slot_off)
        L.wait_vm(("w", 2))
        self.bar("L", "g1")
        L.wait_vm(("w", 3))
        self.bar("L", "g3")
        for i in range(2):
            L.e(f"s_lshl_b32 s{ST+2+i}, s{S_NB}, 1")
            L.e(f"s_add_u32 s{ST+2+i}, s{ST+2+i}, {i}")
            L.e(f"s_mul_i32 s{ST+2+i}, s{ST+2+i}, {112*1024}")
            L.e(f"s_add_u32 s{ST+2+i}, s{ST+2+i}, {WS_WD}")
            L.e(f"s_add_u32 s{ST+2+i}, s{ST+2+i}, s{S_W1K}")

        def dw(stages):
            for st_ in stages:
                for ni in range(2):
                    self.dma_row(DOWN_WBASE + DOWN_PERM[st_] * 8192 + ni * 4096, ST + 2 + ni, st_ * 4096, ("dw", st_))

        self.bar("L", "gF1")
        self.l_tiles("gu", [5, 6], slot_off, thr=False)
        L.wait_vm(("w", 4))
        self.bar("L", "g4")
        dw([0, 1, 2, 3])
        L.wait_vm(("w", 5))
        self.bar("L", "g5")
        dw([4, 5, 6, 7])
        L.wait_vm(("w", 6))
        self.bar("L", "g6")
        dw([8, 9, 10, 11])
        self.bar("L", "gF2")
        L.wait_vm_all()
        k = C
        k.stamp("real_g", real=True)
        k.stamp("t0")
        self.c_lngemm_setup("gu", xoff, stoff)
        s_out = ST + 4
        k.e(f"s_mul_i32 s{s_out}, s{ST}, {112*1024}")
        k.e(f"s_add_u32 s{s_out}, s{s_out}, {WS_HL[layer]}")
        k.e(f"s_mul_i32 s{ST+6}, s{S_CB}, 3072")
        k.e(f"s_add_u32 s{s_out+1}, s{s_out}, s{ST+6}")
        k.e(f"s_add_u32 s{s_out+1}, s{s_out+1}, 65536")
        k.e(f"s_lshl_b32 s{ST+6}, s{S_CB}, 12")
        k.e(f"s_add_u32 s{s_out}, s{s_out}, s{ST+6}")
        self.cnt_off(k, ST + 7, CNT_G[layer], S_RBG)
        self.cnt_off(k, ST + 8, CNT_G2[layer], S_RBG)
        self.cnt_off(k, ST + 6, CNT_W[layer], S_RBG)
        self.wave0_poll(ST + 6, 14)
        self.bar("C", "g1")
        k.stamp("g1")

        def on_step(i, st, pf):
            t, ks, pi, ti = st
            if pi >= 1 and ks == 0:
                self.bar("C", f"g{t}")
                k.stamp(f"g{t}")
            if pi == 1 and ks == pf + 1:
                self.bar("C", "gF1")

        self.c_lngemm("gu", layer, xoff, stoff, phases, slot_off, on_step, 4,
                      on_tiles_done=lambda: self.signal(ST + 7, 13, tag=("st", 3)))
        self.bar("C", "gF2")
        k.stamp("mfma")
        g = self._lng
        for td in g["done"]:
            g["fill"].extend(g["epilogue_gu"](td))
        g["emit_fill"](1e9)
        k.stamp("epi")
        self.signal(ST + 8, self.VT)
        k.stamp("end")
        self.flush_stamps()

    def build(self):
        self.prologue()
        X = [WS_X0, WS_X1, WS_X2, WS_X3]
        STt = [WS_ST0, WS_ST1, WS_ST2, WS_ST3]
        n = 0
        for layer in range(2):
            xin, xmid = 2 * layer, 2 * layer + 1
            if n >= self.stop_after:
                break
            self.phase_qkv(layer, X[xin], STt[xin])
            self.phase_attn(layer)
            n += 2
            if n >= self.stop_after:
                break
            self.phase_tile("wo", layer, WS_OL[layer], WS_WO, 32, X[xin], X[xmid], STt[xmid], CNT_A[layer], 16, CNT_W[layer])
            n += 1
            if n >= self.stop_after:
                break
            self.phase_gu(layer, X[xmid], STt[xmid])
            n += 1
            if n >= self.stop_after:
                break
            last = layer == 1
            self.phase_tile("down", layer, WS_HL[layer], WS_WD, 112, X[xmid], None if last else X[2], None if last else STt[2],
                            CNT_G[layer], 16, None if last else CNT_D[layer], final=last)
            n += 1
        assert self.bars["C"] == self.bars["L"], (self.bars["C"], self.bars["L"])
        k = self.P
        k.ins += self.C.ins
        k.e(f"{self.L_end}:")
        k.e("s_endpgm")
        k.e(f"{self.L_load}:")
        k.ins += self.L.ins
        k.e("s_endpgm")
        k.e("mega_code_end:")
        k.stamps = getattr(self, "stamp_names", [])
        return k, dict(grid=256, block=512, lds=LDS_BYTES)


def build_mega(name="mega_kernel", stop_after=99):
    return Mega(name, stop_after).build()
```

```python
import os
from layout import *
from k_prep import build_prep
from mega import build_mega

def sequence():
    stop = int(os.environ.get("STOP", "99"))
    m = build_mega(stop_after=stop)
    cb = int(os.environ.get("CODEB", "73728"))
    return [build_prep(code_bytes=cb), m]
```

```python
import sys, os, importlib
sys.path.insert(0, os.path.dirname(os.path.abspath(__file__)))
from layout import *

HEADER = """; Kernarg layout for this problem (80 bytes, ptrs only, base s[0:1]):
"""

def build(seq):
    out = [HEADER]
    for k, li in seq:
        out.append(f"; @launch kernel={k.name} grid=({li['grid']},1,1) block=({li['block']},1,1) lds={li['lds']}\n")
    out.append('.amdgcn_target "amdgcn-amd-amdhsa--gfx950"\n.text\n')
    seen = []
    for k, li in seq:
        if k not in seen:
            seen.append(k)
    texts = [k.text() for k in seen]
    out += texts
    out.append('.section .rodata,"a"\n')
    for k in seen:
        out.append(k.descriptor())
    return "".join(out)

if __name__ == "__main__":
    import pipeline, json
    from asmlib import Kernel
    if "--prof" in sys.argv:
        sys.argv.remove("--prof")
        Kernel.PROFILE = True
    seq = pipeline.sequence()
    if Kernel.PROFILE:
        json.dump({k.name: getattr(k, "stamps", []) for k, li in seq}, open("stamps.json", "w"))
    txt = build(seq)
    dst = sys.argv[1] if len(sys.argv) > 1 else "interleave_layers__sliding_block__geglu_ffn__prompt.s"
    open(dst, "w").write(txt)
    print("wrote", dst, len(txt), "bytes")
```

```python
from asmlib import Kernel
from layout import *

N_GU, N_QKV, N_WO, N_WD, N_X = 112, 96, 28, 112, 128
B_G = 0
B_U = B_G + N_GU
B_QKV = B_U + N_GU
B_WO = B_QKV + N_QKV
B_WD = B_WO + N_WO
B_X = B_WD + N_WD
B_Z = B_X + N_X
B_C = B_Z + 11
import os
N_CODE = int(os.environ.get('NCODE', '32'))
N_UNITS = B_C + N_CODE
PREP_LDS = 15360


def srd(k, d, base, nbytes):
    k.e(f"s_mov_b32 s{d}, s{base}")
    k.e(f"s_mov_b32 s{d+1}, s{base+1}")
    k.e(f"s_mov_b32 s{d+2}, {nbytes}")
    k.e(f"s_mov_b32 s{d+3}, 0x00020000")


def build_prep(code_bytes=0):
    k = Kernel("prep_kernel")
    L_end = k.label("end")
    k.e(f"s_cmp_ge_u32 s2, {N_UNITS}")
    k.e(f"s_cbranch_scc1 {L_end}")
    k.e("s_load_dwordx16 s[4:19], s[0:1], 0")
    k.e(f"s_load_dwordx2 s[20:21], s[0:1], {KA_WS}")
    k.e("v_lshrrev_b32 v1, 5, v0")
    k.e("v_lshlrev_b32 v2, 2, v1")
    k.e("v_bfe_u32 v3, v0, 2, 2")
    k.e("v_add_u32 v2, v2, v3")
    k.e("v_lshlrev_b32 v2, 7, v2")
    k.e("v_bfe_u32 v3, v0, 4, 1")
    k.e("v_lshlrev_b32 v4, 5, v3")
    k.e("v_add_u32 v2, v2, v4")
    k.e("v_and_b32 v4, 3, v0")
    k.e("v_lshlrev_b32 v4, 3, v4")
    k.e("v_add_u32 v2, v2, v4")
    k.e("v_lshrrev_b32 v5, 3, v0")
    k.e("v_and_b32 v6, 7, v0")
    k.e("v_lshlrev_b32 v6, 4, v6")
    k.e("v_lshlrev_b32 v7, 4, v0")
    k.e("v_mov_b32 v8, 0x3f803f80")
    k.e("s_waitcnt lgkmcnt(0)")
    srd(k, 24, 20, WS_BYTES)
    labels = {n: k.label(n) for n in ("gate", "up", "qkv", "wo", "wd", "x", "z", "c")}
    for n, b in (("c", B_C), ("z", B_Z), ("x", B_X), ("wd", B_WD), ("wo", B_WO), ("qkv", B_QKV), ("up", B_U)):
        k.e(f"s_cmp_ge_u32 s2, {b}")
        k.e(f"s_cbranch_scc1 {labels[n]}")
    k.e(f"s_branch {labels['gate']}")

    FR = 16

    def dma(pitch):
        k.e(f"s_mov_b32 s34, {pitch}")
        k.e("v_mul_lo_u32 v9, v5, s34")
        k.e("v_add_u32 v9, v9, v6")
        for i in range(14):
            k.e(f"s_mov_b32 m0, {i*1024}")
            k.e(f"buffer_load_dwordx4 v9, s[28:31], s33 offen lds")
            if i < 13:
                k.e(f"s_add_u32 s33, s33, {8*pitch}")
        k.e("s_waitcnt vmcnt(0)")

    def trread(reg, off):
        k.e(f"ds_read_b64_tr_b16 v[{reg}:{reg+1}], v2 offset:{off}")
        k.e(f"ds_read_b64_tr_b16 v[{reg+2}:{reg+3}], v2 offset:{off+1024}")

    def colsum_ext(nfr_per_T, vext, soff_reg_T):
        for T in range(2):
            acc = 10 + T
            k.e(f"v_mov_b32 v{acc}, 0")
            for ksl in range(7):
                r = FR + (ksl * 2 + T) * 4
                for j in range(4):
                    k.e(f"v_dot2c_f32_bf16 v{acc}, v{r+j}, v8")
        for T in range(2):
            acc = 10 + T
            k.e(f"v_mov_b32 v12, v{acc}")
            k.e(f"v_permlane32_swap_b32 v12, v{acc}")
            k.e(f"v_add_f32 v{acc}, v12, v{acc}")
            k.e(f"v_cvt_pk_bf16_f32 v12, v{acc}, v{acc}")
            k.e("v_lshlrev_b32 v12, 16, v12")
            k.e(f"v_sub_f32 v13, v{acc}, v12")
            k.e(f"v_cvt_pk_bf16_f32 v14, v{acc}, v13")
            k.e("v_mov_b32 v15, v14")
            k.e(f"buffer_store_dwordx2 v[14:15], v{vext}, s[24:27], s{soff_reg_T[T]} offen")
            k.e("s_nop 1")

    for half, name, base, ptr in ((0, "gate", B_G, 12), (1, "up", B_U, 14)):
        k.e(f"{labels[name]}:")
        srd(k, 28, ptr, 448 * 3584)
        k.e(f"s_sub_u32 s32, s2, {base}")
        k.e("s_lshr_b32 s35, s32, 2")
        k.e("s_and_b32 s36, s32, 3")
        k.e(f"s_mul_i32 s33, s36, {112*3584}")
        k.e("s_lshl_b32 s37, s35, 7")
        k.e("s_add_u32 s33, s33, s37")
        dma(3584)
        for ksl in range(7):
            for T in range(2):
                trread(FR + (ksl * 2 + T) * 4, ksl * 2048 + T * 64)
        k.e(f"s_mov_b32 s34, {TILE}")
        k.e("v_mul_lo_u32 v3, v3, s34")
        k.e("v_and_b32 v4, 15, v0")
        k.e(f"v_add_u32 v4, {half*16}, v4")
        k.e("v_lshlrev_b32 v4, 4, v4")
        k.e("v_add_u32 v4, v4, v3")
        k.e("v_lshlrev_b32 v3, 9, v1")
        k.e("v_add_u32 v3, v3, v4")
        k.e(f"s_mul_i32 s38, s35, {4*TILE}")
        k.e(f"s_add_u32 s38, s38, {WS_WGU}")
        k.e(f"s_add_u32 s39, s38, {2*TILE}")
        k.e(f"s_mul_i32 s37, s36, {7*1024}")
        k.e("s_add_u32 s40, s38, s37")
        k.e("s_add_u32 s41, s39, s37")
        k.e("s_lshr_b32 s37, s36, 1")
        k.e("s_lshl_b32 s37, s37, 9")
        k.e("s_and_b32 s42, s36, 1")
        k.e("s_lshl_b32 s42, s42, 3")
        k.e("s_add_u32 s37, s37, s42")
        k.e(f"s_add_u32 s37, s37, {28*1024}")
        k.e("s_add_u32 s42, s38, s37")
        k.e("s_add_u32 s43, s39, s37")
        k.e("s_waitcnt lgkmcnt(0)")
        for ksl in range(7):
            if ksl == 4:
                k.e("s_add_u32 s40, s40, 4096")
                k.e("s_add_u32 s41, s41, 4096")
            for T in range(2):
                r = FR + (ksl * 2 + T) * 4
                k.e(f"buffer_store_dwordx4 v[{r}:{r+3}], v3, s[24:27], s{40+T} offen offset:{(ksl%4)*1024}")
        colsum_ext(7, 4, (42, 43))
        k.e(f"s_branch {L_end}")

    k.e(f"{labels['qkv']}:")
    srd(k, 28, 6, 448 * 2688)
    k.e(f"s_sub_u32 s32, s2, {B_QKV}")
    k.e("s_lshr_b32 s35, s32, 5")
    k.e("s_bfe_u32 s44, s32, 0x30002")
    k.e("s_and_b32 s36, s32, 3")
    k.e(f"s_mul_i32 s33, s36, {112*2688}")
    k.e("s_mul_i32 s37, s35, 896")
    k.e("s_add_u32 s33, s33, s37")
    k.e("s_mul_i32 s37, s44, 112")
    k.e("s_add_u32 s33, s33, s37")
    dma(2688)
    for ksl in range(7):
        for T in range(2):
            trread(FR + (ksl * 2 + T) * 4, ksl * 2048 + T * 56)
    k.e(f"s_mul_i32 s38, s44, {6*TILE}")
    k.e(f"s_mul_i32 s37, s35, {TILE}")
    k.e("s_add_u32 s38, s38, s37")
    k.e(f"s_add_u32 s38, s38, {WS_WQKV}")
    k.e(f"s_add_u32 s39, s38, {3*TILE}")
    k.e(f"s_mul_i32 s37, s36, {7*1024}")
    k.e("s_add_u32 s40, s38, s37")
    k.e("s_add_u32 s41, s39, s37")
    k.e("s_lshr_b32 s37, s36, 1")
    k.e("s_lshl_b32 s37, s37, 9")
    k.e("s_and_b32 s42, s36, 1")
    k.e("s_lshl_b32 s42, s42, 3")
    k.e("s_add_u32 s37, s37, s42")
    k.e(f"s_add_u32 s37, s37, {28*1024}")
    k.e("s_add_u32 s42, s38, s37")
    k.e("s_add_u32 s43, s39, s37")
    k.e("v_and_b32 v4, 31, v0")
    k.e("v_cmp_gt_u32 vcc, 28, v4")
    k.e("v_lshlrev_b32 v4, 4, v4")
    k.e("s_waitcnt lgkmcnt(0)")
    for i in range(14 * 4):
        k.e(f"v_cndmask_b32 v{FR+i}, 0, v{FR+i}, vcc")
    for ksl in range(7):
        if ksl == 4:
            k.e("s_add_u32 s40, s40, 4096")
            k.e("s_add_u32 s41, s41, 4096")
        for T in range(2):
            r = FR + (ksl * 2 + T) * 4
            k.e(f"buffer_store_dwordx4 v[{r}:{r+3}], v7, s[24:27], s{40+T} offen offset:{(ksl%4)*1024}")
    colsum_ext(7, 4, (42, 43))
    k.e(f"s_branch {L_end}")

    k.e(f"{labels['wo']}:")
    srd(k, 28, 8, 448 * 896)
    k.e(f"s_sub_u32 s32, s2, {B_WO}")
    k.e("s_lshr_b32 s35, s32, 2")
    k.e("s_and_b32 s36, s32, 3")
    k.e(f"s_mul_i32 s33, s36, {112*896}")
    k.e("s_lshl_b32 s37, s35, 7")
    k.e("s_add_u32 s33, s33, s37")
    dma(896)
    for hl in range(4):
        for u in range(2):
            for T in range(2):
                trread(FR + ((hl * 2 + u) * 2 + T) * 4, (28 * hl + 16 * u) * 128 + T * 64)
    k.e("s_lshl_b32 s38, s35, 16")
    k.e(f"s_add_u32 s38, s38, {WS_WO}")
    k.e("s_lshl_b32 s37, s36, 13")
    k.e("s_add_u32 s40, s38, s37")
    k.e("s_add_u32 s41, s40, 32768")
    k.e("v_cmp_gt_u32 vcc, 32, v0")
    k.e("s_waitcnt lgkmcnt(0)")
    for hl in range(4):
        for T in range(2):
            r = FR + ((hl * 2 + 1) * 2 + T) * 4
            k.e(f"v_cndmask_b32 v{r+2}, 0, v{r+2}, vcc")
            k.e(f"v_cndmask_b32 v{r+3}, 0, v{r+3}, vcc")
    for s8 in range(8):
        if s8 == 4:
            k.e("s_add_u32 s40, s40, 4096")
            k.e("s_add_u32 s41, s41, 4096")
        for T in range(2):
            r = FR + (s8 * 2 + T) * 4
            k.e(f"buffer_store_dwordx4 v[{r}:{r+3}], v7, s[24:27], s{40+T} offen offset:{(s8%4)*1024}")
    k.e(f"s_branch {L_end}")

    k.e(f"{labels['wd']}:")
    srd(k, 28, 16, 1792 * 896)
    k.e(f"s_sub_u32 s32, s2, {B_WD}")
    k.e("s_lshr_b32 s35, s32, 4")
    k.e("s_and_b32 s36, s32, 15")
    k.e(f"s_mul_i32 s33, s36, {112*896}")
    k.e("s_lshl_b32 s37, s35, 7")
    k.e("s_add_u32 s33, s33, s37")
    dma(896)
    for ksl in range(7):
        for T in range(2):
            trread(FR + (ksl * 2 + T) * 4, ksl * 2048 + T * 64)
    k.e(f"s_mul_i32 s38, s35, {2*114688}")
    k.e(f"s_add_u32 s38, s38, {WS_WD}")
    k.e("s_lshl_b32 s37, s36, 12")
    k.e("s_add_u32 s40, s38, s37")
    k.e("s_add_u32 s41, s40, 114688")
    k.e("s_mul_i32 s37, s36, 3072")
    k.e("s_add_u32 s42, s38, s37")
    k.e("s_add_u32 s42, s42, 65536")
    k.e("s_add_u32 s43, s42, 114688")
    k.e("s_waitcnt lgkmcnt(0)")
    for ksl in range(7):
        for T in range(2):
            r = FR + (ksl * 2 + T) * 4
            k.e(f"buffer_store_dwordx4 v[{r}:{r+3}], v7, s[24:27], s{40+T+2*(ksl//4)} offen offset:{(ksl%4)*1024}")
    k.e(f"s_branch {L_end}")

    k.e(f"{labels['c']}:")
    k.e("s_getpc_b64 s[32:33]")
    k.e("prep_pc_anchor:")
    k.e("s_add_u32 s32, s32, mega_kernel-prep_pc_anchor")
    k.e("s_addc_u32 s33, s33, 0")
    k.e("v_lshlrev_b32 v4, 6, v0")
    for i in range(code_bytes // 4096 + 1):
        k.e("v_min_u32 v5, mega_code_end-mega_kernel-4, v4")
        k.e(f"global_load_dword v{16+(i%32)}, v5, s[32:33]")
        k.e("v_add_u32 v4, 4096, v4")
    k.e(f"s_branch {L_end}")

    k.e(f"{labels['z']}:")
    k.e(f"s_sub_u32 s32, s2, {B_Z}")
    k.e("s_lshl_b32 s33, s32, 14")
    k.e(f"s_add_u32 s33, s33, {WS_CNT}")
    k.e("v_lshlrev_b32 v4, 8, v0")
    k.e("v_mov_b32 v10, 0")
    k.e("buffer_store_dword v10, v4, s[24:27], s33 offen")
    k.e(f"s_branch {L_end}")

    k.e(f"{labels['x']}:")
    srd(k, 28, 4, S * 896)
    k.e(f"s_sub_u32 s32, s2, {B_X}")
    k.e("s_lshr_b32 s35, s32, 1")
    k.e("s_and_b32 s36, s32, 1")
    k.e("s_mul_i32 s33, s35, 28672")
    k.e("s_mul_i32 s37, s36, 448")
    k.e("s_add_u32 s34, s33, s37")
    k.e("v_and_b32 v4, 31, v0")
    k.e("s_movk_i32 s37, 896")
    k.e("v_mul_lo_u32 v4, v4, s37")
    k.e("v_lshlrev_b32 v3, 4, v1")
    k.e("v_add_u32 v4, v4, v3")
    for i in range(14):
        r = FR + i * 4
        k.e(f"buffer_load_dwordx4 v[{r}:{r+3}], v4, s[28:31], s34 offen offset:{i*32}")
    k.e("s_mul_i32 s37, s36, 14336")
    k.e("s_add_u32 s40, s33, s37")
    k.e(f"s_add_u32 s40, s40, {WS_X0}")
    k.e("v_mov_b32 v10, 0")
    k.e("v_mov_b32 v11, 0")
    for i in range(14):
        r = FR + i * 4
        k.e("s_waitcnt vmcnt(13)")
        k.e(f"v_permlane32_swap_b32 v{r}, v{r+2}")
        k.e(f"v_permlane32_swap_b32 v{r+1}, v{r+3}")
        if i and i % 4 == 0:
            k.e("s_add_u32 s40, s40, 4096")
        k.e(f"buffer_store_dwordx4 v[{r}:{r+3}], v7, s[24:27], s40 offen offset:{(i%4)*1024}")
        for j in range(4):
            k.e(f"v_dot2c_f32_bf16 v10, v{r+j}, v8")
            k.e(f"v_dot2c_f32_bf16 v11, v{r+j}, v{r+j}")
    k.e("v_mov_b32 v12, v10")
    k.e("v_mov_b32 v13, v11")
    k.e("v_permlane32_swap_b32 v12, v10")
    k.e("v_permlane32_swap_b32 v13, v11")
    k.e("v_add_f32 v10, v12, v10")
    k.e("v_add_f32 v11, v13, v11")
    k.e("v_cmp_gt_u32 vcc, 32, v0")
    k.e("s_mul_i32 s37, s35, 3584")
    k.e("s_mul_i32 s38, s36, 1792")
    k.e("s_add_u32 s37, s37, s38")
    k.e(f"s_add_u32 s37, s37, {WS_ST0}")
    k.e("v_cndmask_b32 v10, 0, v10, vcc")
    k.e("v_cndmask_b32 v11, 0, v11, vcc")
    k.e("v_lshlrev_b32 v12, 3, v0")
    k.e("v_mov_b32 v14, 0")
    k.e("v_mov_b32 v15, 0")
    k.e("buffer_store_dwordx2 v[10:11], v12, s[24:27], s37 offen")
    k.e("buffer_store_dwordx2 v[14:15], v12, s[24:27], s37 offen offset:512")
    k.e("buffer_store_dwordx2 v[14:15], v12, s[24:27], s37 offen offset:1024")
    k.e("buffer_store_dwordx2 v[14:15], v12, s[24:27], s37 offen offset:1280")
    k.e(f"{L_end}:")
    k.e("s_endpgm")
    return k, dict(grid=N_UNITS, block=64, lds=PREP_LDS)
```
